```python
import torch

def _softmax(x, axis=-1):
    return torch.softmax(x, dim=axis)

def _gelu(x):
    return torch.nn.functional.gelu(x, approximate='tanh')

def _silu(x):
    return torch.nn.functional.silu(x)

def _sigmoid(x):
    return torch.sigmoid(x)

def _layernorm(x, axis=-1, eps=1e-05):
    m = x.mean(dim=axis, keepdim=True)
    v = x.var(dim=axis, keepdim=True, unbiased=False)
    return (x - m) / torch.sqrt(v + eps)

def _scatter_add(tgt, idx, src, axis=0):
    return tgt.clone().index_add_(axis, idx, src)

def _segment_sum(src, seg, n):
    out = torch.zeros((n,) + src.shape[1:], dtype=src.dtype)
    return out.index_add_(0, seg, src)

def _pad(x, pw):
    flat = tuple((v for pair in reversed(pw) for v in pair))
    return torch.nn.functional.pad(x, flat)
kernel_name = 'parallel_sum__linear_attn_block__mixer_gmlp__prompt'

def setup_inputs():

    _w = lambda a: (lambda t: t.to(torch.bfloat16) if t.is_floating_point() else t)(torch.as_tensor(a))

    def _A_setup():
        B, S, D = (1, 2048, 576)
        return {'x': _w((lambda *s: torch.randn(*s, dtype=torch.bfloat16) * 0.05)(B, S, D)), 'wqkv': _w((lambda *s: torch.randn(*s, dtype=torch.bfloat16) * 1.6)(D, 3 * D)), 'wo': _w((lambda *s: torch.randn(*s, dtype=torch.bfloat16) * 0.2)(D, D))}
    _A_in = _A_setup()

    def _B_setup():
        B, S, D, F = (1, 2048, 576, 4608)
        Fh = F // 2
        return {'x': _w((lambda *s: torch.randn(*s, dtype=torch.bfloat16) * 0.05)(B, S, D)), 'w_in': _w((lambda *s: torch.randn(*s, dtype=torch.bfloat16) * 0.4)(D, 2 * Fh)), 'w_sp': _w(0.01 * (lambda *s: torch.randn(*s, dtype=torch.bfloat16) * 0.4)(S, S)), 'b_sp': _w(1.0 + 0.01 * (lambda *s: torch.randn(*s, dtype=torch.bfloat16) * 0.05)(S)), 'w_out': _w((lambda *s: torch.randn(*s, dtype=torch.bfloat16) * 0.05)(Fh, D))}
    _B_in = _B_setup()
    return {'A_x': _A_in['x'], 'A_wqkv': _A_in['wqkv'], 'A_wo': _A_in['wo'], 'B_x': _B_in['x'], 'B_w_in': _B_in['w_in'], 'B_w_sp': _B_in['w_sp'], 'B_b_sp': _B_in['b_sp'], 'B_w_out': _B_in['w_out']}

def reference(A_x, A_wqkv, A_wo, B_x, B_w_in, B_w_sp, B_b_sp, B_w_out):

    def _A_ref(x, wqkv, wo):
        B, S, D = x.shape
        H = 32
        Dh = D // H
        qkv = (lambda x, *d: x.permute(*d))((x @ wqkv).reshape(B, S, 3, H, Dh), 2, 0, 3, 1, 4)
        q, k, v = (qkv[0], qkv[1], qkv[2])
        phi = lambda t: torch.where(t > 0, t + 1, torch.exp(t)) + 1e-06
        pq, pk = (phi(q), phi(k))
        kv = torch.einsum('bhsd,bhse->bhde', pk, v)
        z = torch.einsum('bhsd->bhd', pk)
        num = torch.einsum('bhqd,bhde->bhqe', pq, kv)
        den = torch.einsum('bhqd,bhd->bhq', pq, z)[..., None] + 1e-06
        o = num / den
        return (lambda x, *d: x.permute(*d))(o, 0, 2, 1, 3).reshape(B, S, D) @ wo

    def _B_ref(x, w_in, w_sp, b_sp, w_out):
        B, S, D = x.shape
        F = w_in.shape[-1]
        Fh = F // 2
        z = _gelu(torch.einsum('bsd,df->bsf', x, w_in))
        z1 = z[..., :Fh].clone()
        z2 = _layernorm(z[..., Fh:], axis=-1)
        g = torch.einsum('ts,bsf->btf', w_sp, z2) + b_sp[None, :, None]
        return torch.einsum('bsf,fd->bsd', z1 * g, w_out)
    x = A_x
    xn = _layernorm(x, axis=-1)
    return x + _A_ref(xn, A_wqkv, A_wo) + _B_ref(xn, B_w_in, B_w_sp, B_b_sp, B_w_out)
```

```python
class Asm:
    def __init__(self):
        self.lines = []
        self._uid = 0
    def __call__(self, s):
        for ln in s.split("\n"):
            ln = ln.strip()
            if ln:
                self.lines.append("    " + ln)
    def label(self, name):
        self.lines.append(name + ":")
    def comment(self, s):
        self.lines.append("    ; " + s)
    def raw(self, s):
        self.lines.append(s)
    def uid(self, p="L"):
        self._uid += 1
        return f"{p}_{self._uid}"
    def text(self):
        return "\n".join(self.lines) + "\n"

def kernel_header(a, name):
    a.raw(f".globl {name}")
    a.raw(".p2align 8")
    a.raw(f".type {name},@function")
    a.label(name)

def kernel_desc(name, vgpr, sgpr, accum, kernarg=88):
    return f""".amdhsa_kernel {name}
  .amdhsa_next_free_vgpr {vgpr}
  .amdhsa_next_free_sgpr {sgpr}
  .amdhsa_accum_offset {accum}
  .amdhsa_group_segment_fixed_size 0
  .amdhsa_kernarg_size {kernarg}
  .amdhsa_user_sgpr_count 2
  .amdhsa_user_sgpr_kernarg_segment_ptr 1
  .amdhsa_system_sgpr_workgroup_id_x 1
.end_amdhsa_kernel
"""

def srd(a, d, base, nbytes):
    a(f"s_mov_b32 s{d}, s{base}")
    a(f"s_and_b32 s{d+1}, s{base+1}, 0xffff")
    a(f"s_mov_b32 s{d+2}, {nbytes}")
    a(f"s_mov_b32 s{d+3}, 0x00020000")

STAMP_BASE_SGPR = 64
WS_STAMP = 48 << 20
class Stamps:
    def __init__(self, a, on, kidx):
        self.a, self.on, self.kidx, self.n = a, on, kidx, 0
    def mark(self, i):
        if self.on:
            self.a(f"s_memtime s[{STAMP_BASE_SGPR+2*i}:{STAMP_BASE_SGPR+2*i+1}]")
            self.n = max(self.n, i + 1)
    def markrt(self, i):
        if self.on:
            self.a(f"s_memrealtime s[{STAMP_BASE_SGPR+2*i}:{STAMP_BASE_SGPR+2*i+1}]")
    def dump(self, n, swave, vt0, vt1, sbase=96):
        if not self.on:
            return
        a = self.a
        a(f"s_load_dwordx2 s[{sbase+4}:{sbase+5}], s[0:1], 80")
        a("s_waitcnt lgkmcnt(0) vmcnt(0)")
        a(f"s_mov_b32 s{sbase}, s{sbase+4}")
        a(f"s_and_b32 s{sbase+1}, s{sbase+5}, 0xffff")
        a(f"s_mov_b32 s{sbase+2}, {64<<20}")
        a(f"s_mov_b32 s{sbase+3}, 0x00020000")
        a(f"s_lshl_b32 s{sbase+4}, s2, 4")
        a(f"s_add_u32 s{sbase+4}, s{sbase+4}, s{swave}")
        a(f"s_lshl_b32 s{sbase+4}, s{sbase+4}, 6")
        a(f"s_add_u32 s{sbase+4}, s{sbase+4}, {WS_STAMP + (self.kidx << 20)}")
        a(f"v_mov_b32 v{vt1}, 0")
        for i in range(n):
            a(f"v_mov_b32 v{vt0}, s{STAMP_BASE_SGPR+2*i}")
            a(f"buffer_store_dword v{vt0}, v{vt1}, s[{sbase}:{sbase+3}], s{sbase+4} offen offset:{4*i}")
            a("s_nop 1")
        a("s_waitcnt vmcnt(0)")
```

```python
from asmlib import *
from layout import *
from k2 import swap_pair, r4

WSLOT = 20480
NRING = 4
PARK0 = WSLOT * NRING
PARK1 = PARK0 + 36864
K1_LDS = PARK1 + 36864
DLOOK = 6
OOB = 0x7f000000

XA = 0
ACC = 144
RING = 216
VD = 244
vRd = 249
vRdB = 250
vLane = 251
vT = 252
NV = 256
def xa(j, ks): return XA + (ks*2+j)*4
def acc(j, b): return ACC + (b*2+j)*4

sM, sCG, sRole, sW8, sW4, sG = 20, 21, 22, 23, 24, 25
sStep = 26
sCol = [27, 28, 29]
sDoff, sDslot, sRslot = 30, 31, 32
sT0, sT1, sT2, sT3, sT4 = 33, 34, 35, 36, 37
sColNext = 38
sSync = 39
sN = 40
sPark = 41
sPub = 42
sWm0 = 43
sGC = 46
sL2E = 48
sEps6 = 49
sRet = 50
sNt = [52, 53, 54]
sSpin = 55
sOnes = 56

def gen_k1(a, name="k1_kernel", stamps=False):
    st = Stamps(a, stamps, 0)
    N = name
    def lane_cg(vc, vg):
        a(f"v_and_b32 v{vc}, 15, v{vLane}")
        a(f"v_lshrrev_b32 v{vg}, 4, v{vLane}")
    def dma_issue():
        a(f"s_add_u32 m0, s{sDslot}, s{sWm0}")
        a(f"s_add_u32 s{sDslot}, s{sDslot}, {WSLOT}")
        for p in range(4):
            a(f"buffer_load_dwordx4 v{VD+p}, s[8:11], s{sDoff} offen offset:{p*1024} lds")
        a("s_add_u32 m0, m0, 4096")
        a(f"s_cmp_ge_u32 s{sDslot}, {WSLOT*NRING}")
        a(f"buffer_load_dwordx4 v{VD+4}, s[8:11], s{sDoff} offen lds")
        a(f"s_cselect_b32 s{sDslot}, 0, s{sDslot}")
        a(f"s_add_u32 s{sDoff}, s{sDoff}, s{sStep}")
    def side_sync(slot, nvm=5, cond=True, lgkm=False):
        L = a.uid(f"{N}_ns")
        if cond:
            a(f"s_cmp_eq_u32 s{sSync}, 0")
            a(f"s_cbranch_scc1 {L}")
        a(f"s_waitcnt vmcnt({nvm})" + (" lgkmcnt(0)" if lgkm else ""))
        a("s_barrier")
        if slot == 6:
            a(f"s_mov_b32 s{sDoff}, s{sColNext}")
        dma_issue()
        if cond:
            a.label(L)
    def set_flag():
        L = a.uid(f"{N}_nf")
        a(f"s_cmp_lg_u32 s{sW4}, 0")
        a(f"s_cbranch_scc1 {L}")
        a(f"s_lshl_b32 s{sT0}, s{sM}, 4")
        a(f"s_lshl_b32 s{sT1}, s{sCG}, 2")
        a(f"s_add_u32 s{sT0}, s{sT0}, s{sT1}")
        a(f"s_add_u32 s{sT0}, s{sT0}, s{sRole}")
        a(f"v_mov_b32 v{RING+24}, 1")
        a(f"v_mov_b32 v{RING+25}, 0")
        a(f"buffer_store_byte v{RING+24}, v{RING+25}, s[16:19], s{sT0} offen sc1")
        a.label(L)

    kernel_header(a, name)
    a("s_cmp_ge_u32 s2, 256")
    a(f"s_cbranch_scc1 {N}_end")
    st.mark(0)
    a("s_load_dwordx4 s[56:59], s[0:1], 0")
    a("s_load_dwordx2 s[60:61], s[0:1], 32")
    a("s_load_dwordx4 s[64:67], s[0:1], 72" if not stamps else "s_load_dwordx4 s[92:95], s[0:1], 72")
    PD = 64 if not stamps else 92
    a(f"v_lshrrev_b32 v{vT}, 6, v0")
    a(f"v_and_b32 v{vLane}, 63, v0")
    a(f"v_readfirstlane_b32 s{sW8}, v{vT}")
    a(f"s_and_b32 s{sT0}, s2, 7")
    a(f"s_lshr_b32 s{sT1}, s2, 3")
    a(f"s_and_b32 s{sM}, s{sT0}, 1")
    a(f"s_lshl_b32 s{sM}, s{sM}, 3")
    a(f"s_and_b32 s{sT2}, s{sT1}, 7")
    a(f"s_add_u32 s{sM}, s{sM}, s{sT2}")
    a(f"s_lshr_b32 s{sCG}, s{sT0}, 1")
    a(f"s_lshr_b32 s{sRole}, s{sT1}, 3")
    a(f"s_and_b32 s{sW4}, s{sW8}, 3")
    a(f"s_lshr_b32 s{sG}, s{sW8}, 2")
    a(f"s_mul_i32 s{sWm0}, s{sW4}, 5120")
    a(f"s_mov_b32 s{sGC}, 0xc0135761")
    a(f"s_mov_b32 s{sGC+1}, 0xbdd2d3e8")
    a(f"s_mov_b32 s{sL2E}, 0x3fb8aa3b")
    a(f"s_mov_b32 s{sEps6}, 0x358637bd")
    a(f"v_lshrrev_b32 v{vT}, 3, v{vLane}")
    a(f"v_and_b32 v{vT+1}, 7, v{vLane}")
    a(f"v_xor_b32 v{vT+1}, v{vT+1}, v{vT}")
    a(f"v_lshlrev_b32 v{vT+1}, 4, v{vT+1}")
    a(f"s_lshl_b32 s{sT2}, s{sM}, 7")
    a(f"v_add_u32 v{vT}, s{sT2}, v{vT}")
    a(f"v_mul_u32_u24 v{vT}, 1152, v{vT}")
    a(f"v_add_u32 v{vT}, v{vT}, v{vT+1}")
    a(f"s_lshl_b32 s{sT2}, s{sCG}, 2")
    a(f"s_add_u32 s{sT2}, s{sT2}, s{sRole}")
    a(f"s_mul_i32 s{sT2}, s{sT2}, 9")
    a(f"s_add_u32 s{sT2}, s{sT2}, s{sW8}")
    a("s_waitcnt lgkmcnt(0)")
    srd(a, 4, 56, S*D*2)
    srd(a, 12, PD+2, WS_END)
    srd(a, 16, PD, 256)
    for q in range(18):
        a(f"s_cmp_ge_u32 s{sT2}, 144")
        a(f"s_cselect_b32 s{sT3}, 144, 0")
        a(f"s_sub_u32 s{sT2}, s{sT2}, s{sT3}")
        a(f"s_mul_hi_u32 s{sT3}, s{sT2}, {(2**32+8)//9}")
        a(f"s_lshl_b32 m0, s{sT2}, 10")
        a(f"s_mul_i32 s{sT4}, s{sT3}, {9216-9*128}")
        a(f"s_lshl_b32 s{sT3}, s{sT2}, 7")
        a(f"s_add_u32 s{sT3}, s{sT3}, s{sT4}")
        a(f"buffer_load_dwordx4 v{vT}, s[4:7], s{sT3} offen lds")
        a(f"s_add_u32 s{sT2}, s{sT2}, 8")
    a(f"s_mov_b32 s{sT3}, {D*F*2}")
    a(f"s_movk_i32 s{sT2}, 9216")
    a(f"s_cmp_eq_u32 s{sRole}, 0")
    a(f"s_cselect_b32 s8, s58, s60")
    a(f"s_cselect_b32 s9, s59, s61")
    a(f"s_cselect_b32 s10, {D*3*D*2}, s{sT3}")
    a(f"s_cselect_b32 s{sT4}, 3456, s{sT2}")
    a(f"s_and_b32 s9, s9, 0xffff")
    a("s_mov_b32 s11, 0x00020000")
    a(f"s_lshl_b32 s{sStep}, s{sT4}, 6")
    a(f"s_mul_i32 s{sT0}, s{sCG}, 288")
    a(f"s_lshl_b32 s{sT1}, s{sCG}, 2")
    a(f"s_cmp_eq_u32 s{sRole}, 0")
    a(f"s_cbranch_scc0 {N}_rz")
    a(f"s_add_u32 s{sCol[0]}, s{sT0}, 1152")
    a(f"s_add_u32 s{sCol[1]}, s{sT0}, 2304")
    a(f"s_mov_b32 s{sCol[2]}, s{sT0}")
    for i in range(3):
        a(f"s_mov_b32 s{sNt[i]}, s{sCG}")
    a(f"s_branch {N}_rdone")
    a.label(f"{N}_rz")
    a(f"s_cmp_eq_u32 s{sRole}, 1")
    a(f"s_cbranch_scc0 {N}_rc")
    a(f"s_mov_b32 s{sNt[0]}, s{sT1}")
    a(f"s_add_u32 s{sNt[1]}, s{sT1}, 1")
    a(f"s_mov_b32 s{sNt[2]}, 0")
    a(f"s_mul_i32 s{sCol[0]}, s{sNt[0]}, 288")
    a(f"s_add_u32 s{sCol[0]}, s{sCol[0]}, 4608")
    a(f"s_add_u32 s{sCol[1]}, s{sCol[0]}, 288")
    a(f"s_mov_b32 s{sCol[2]}, {OOB}")
    a(f"s_branch {N}_rdone")
    a.label(f"{N}_rc")
    a(f"s_add_u32 s{sNt[0]}, s{sT1}, s{sRole}")
    a(f"s_sub_u32 s{sT2}, s{sRole}, 2")
    a(f"s_lshl_b32 s{sT2}, s{sT2}, 1")
    a(f"s_add_u32 s{sNt[1]}, s{sT1}, s{sT2}")
    a(f"s_add_u32 s{sNt[2]}, s{sNt[1]}, 1")
    a(f"s_mul_i32 s{sCol[0]}, s{sNt[0]}, 288")
    a(f"s_add_u32 s{sCol[0]}, s{sCol[0]}, 4608")
    a(f"s_mul_i32 s{sCol[1]}, s{sNt[1]}, 288")
    a(f"s_add_u32 s{sCol[2]}, s{sCol[1]}, 288")
    a.label(f"{N}_rdone")
    t0, t1, t2, t3 = RING, RING+1, RING+2, RING+3
    a(f"s_mul_i32 s{sT0}, s{sW4}, 320")
    a(f"v_mov_b32 v{t3}, {OOB}")
    for p in range(5):
        a(f"v_add_u32 v{t0}, s{sT0}, v{vLane}")
        if p:
            a(f"v_add_u32 v{t0}, {64*p}, v{t0}")
        a(f"v_mul_u32_u24 v{t1}, 3277, v{t0}")
        a(f"v_lshrrev_b32 v{t1}, 16, v{t1}")
        a(f"v_mul_u32_u24 v{t2}, 20, v{t1}")
        a(f"v_sub_u32 v{t0}, v{t0}, v{t2}")
        a(f"v_bfe_u32 v{t2}, v{t1}, 3, 1")
        a(f"v_lshlrev_b32 v{t2}, 1, v{t2}")
        a(f"v_sub_u32 v{t0}, v{t0}, v{t2}")
        a(f"v_cmp_gt_u32 vcc, 18, v{t0}")
        a(f"v_mul_lo_u32 v{t1}, v{t1}, s{sT4}")
        a(f"v_lshl_add_u32 v{t1}, v{t0}, 4, v{t1}")
        a(f"v_add_u32 v{t1}, {4096 - (p % 4)*1024}, v{t1}")
        a(f"v_cndmask_b32 v{VD+p}, v{t3}, v{t1}, vcc")
    a("s_sub_u32 s8, s8, 4096")
    a("s_subb_u32 s9, s9, 0")
    a("s_add_u32 s10, s10, 4096")
    lane_cg(t0, t1)
    a(f"v_lshrrev_b32 v{t2}, 2, v{t0}")
    a(f"v_lshl_add_u32 v{t2}, v{t1}, 3, v{t2}")
    a(f"v_mul_u32_u24 v{t2}, 320, v{t2}")
    a(f"v_and_b32 v{t3}, 1, v{t1}")
    a(f"v_lshl_add_u32 v{t2}, v{t3}, 5, v{t2}")
    a(f"v_and_b32 v{t3}, 3, v{t0}")
    a(f"v_lshl_add_u32 v{vRdB}, v{t3}, 3, v{t2}")
    a(f"v_lshrrev_b32 v{t2}, 3, v{t0}")
    a(f"v_mul_u32_u24 v{t2}, 9216, v{t2}")
    a(f"v_and_b32 v{t3}, 7, v{t0}")
    a(f"v_lshl_add_u32 v{t2}, v{t3}, 7, v{t2}")
    a(f"v_xor_b32 v{t3}, v{t3}, v{t1}")
    a(f"v_lshl_add_u32 v{t2}, v{t3}, 4, v{t2}")
    a(f"s_mul_i32 s{sT0}, s{sW4}, 36864")
    a(f"v_add_u32 v{t2}, s{sT0}, v{t2}")
    a(f"v_xor_b32 v{t3}, 64, v{t2}")
    a("s_waitcnt vmcnt(0)")
    a("s_barrier")
    st.mark(1)
    for ks in range(18):
        for j in range(2):
            a(f"ds_read_b128 {r4(xa(j,ks))}, v{t2 + (ks&1)} offset:{j*18432 + (ks>>1)*1024}")
        if ks % 6 == 5:
            a("s_waitcnt lgkmcnt(0)")
    a("s_barrier")
    a(f"s_mov_b32 s{sDslot}, 0")
    a(f"s_mov_b32 s{sDoff}, s{sCol[0]}")
    a(f"s_cmp_eq_u32 s{sG}, 0")
    a(f"s_cbranch_scc1 {N}_nodma0")
    for _ in range(3):
        dma_issue()
    a.label(f"{N}_nodma0")
    SS = ACC
    a(f"s_mov_b32 s{sOnes}, 0x3f803f80")
    for i in range(8):
        a(f"v_mov_b32 v{SS+i}, 0")
    for ks in range(18):
        for j in range(2):
            for r in range(4):
                x = xa(j, ks) + r
                o = 4 if (r & 1) else 0
                a(f"v_dot2c_f32_bf16 v{SS+o+j*2}, s{sOnes}, v{x}")
                a(f"v_dot2c_f32_bf16 v{SS+o+j*2+1}, v{x}, v{x}")
    a("s_nop 3")
    for i in range(4):
        a(f"v_add_f32 v{SS+i}, v{SS+i}, v{SS+4+i}")
    for sw in ("v_permlane32_swap_b32", "v_permlane16_swap_b32"):
        for i in range(4):
            a(f"v_mov_b32 v{SS+4+i}, v{SS+i}")
        a("s_nop 1")
        for i in range(4):
            a(f"{sw} v{SS+i}, v{SS+4+i}")
        a("s_nop 1")
        for i in range(4):
            a(f"v_add_f32 v{SS+i}, v{SS+i}, v{SS+4+i}")
    LNP = ACC + 8
    def finish_stats(s0, q0, out, inv_n):
        a(f"v_mul_f32 v{s0}, {inv_n}, v{s0}")
        a(f"v_mul_f32 v{q0}, {inv_n}, v{q0}")
        a(f"v_fma_f32 v{q0}, -v{s0}, v{s0}, v{q0}")
        a(f"v_max_f32 v{q0}, 0, v{q0}")
        a(f"v_add_f32 v{q0}, 0x3727c5ac, v{q0}")
        a(f"v_rsq_f32 v{out}, v{q0}")
        a("s_nop 0")
        a(f"v_mul_f32 v{out+1}, v{s0}, v{out}")
        a(f"v_sub_f32 v{out+1}, 0, v{out+1}")
    import struct
    def f2h(x): return hex(struct.unpack("<I", struct.pack("<f", x))[0])
    for j in range(2):
        finish_stats(SS+j*2, SS+j*2+1, LNP+j*2, f2h(1.0/576))
    def normalize(ks, tmp):
        for j in range(2):
            for r in range(4):
                x = xa(j, ks) + r
                t = tmp + 2*((j*4+r) % 4)
                a(f"v_lshlrev_b32 v{t}, 16, v{x}")
                a(f"v_and_b32 v{t+1}, 0xffff0000, v{x}")
                a(f"v_pk_fma_f32 v[{t}:{t+1}], v[{t}:{t+1}], v[{LNP+j*2}:{LNP+j*2+1}], v[{LNP+j*2}:{LNP+j*2+1}] op_sel:[0,0,1] op_sel_hi:[1,0,1]")
                a(f"v_cvt_pk_bf16_f32 v{x}, v{t}, v{t+1}")
    a(f"s_cmp_eq_u32 s{sG}, 1")
    a(f"s_cbranch_scc1 {N}_g1")
    a("s_setprio 2")
    for ks in range(18):
        normalize(ks, RING)
    st.mark(2)
    a("s_barrier")
    a(f"s_mov_b32 s{sRslot}, 0")
    a(f"s_call_b64 s[{sRet}:{sRet+1}], {N}_main0")
    st.mark(3)
    a("s_setprio 0")
    a(f"s_mov_b32 s{sSync}, 1")
    a(f"s_mov_b32 s{sDslot}, 0")
    a(f"s_mul_i32 s{sDoff}, s{sStep}, 3")
    a(f"s_add_u32 s{sDoff}, s{sDoff}, s{sCol[1]}")
    a(f"s_mov_b32 s{sColNext}, s{sCol[2]}")
    a(f"s_mov_b32 s{sN}, s{sNt[0]}")
    a(f"s_mov_b32 s{sPark}, {PARK0}")
    a(f"s_cmp_eq_u32 s{sRole}, 0")
    a(f"s_cbranch_scc1 {N}_g0q")
    a(f"s_call_b64 s[{sRet}:{sRet+1}], {N}_epi_z2")
    st.mark(4)
    a(f"s_cmp_eq_u32 s{sRole}, 1")
    a(f"s_cbranch_scc0 {N}_g0t2")
    a("s_waitcnt vmcnt(0)")
    a("s_barrier")
    a(f"s_call_b64 s[{sRet}:{sRet+1}], {N}_final")
    a(f"s_branch {N}_done")
    a.label(f"{N}_g0q")
    a(f"s_call_b64 s[{sRet}:{sRet+1}], {N}_epi_k")
    st.mark(4)
    a.label(f"{N}_g0t2")
    a("s_setprio 2")
    a(f"s_mov_b32 s{sRslot}, {2*WSLOT}")
    a(f"s_call_b64 s[{sRet}:{sRet+1}], {N}_main1")
    st.mark(5)
    a(f"s_mov_b32 s{sSync}, 0")
    a(f"s_mov_b32 s{sPub}, 0")
    a(f"s_mov_b32 s{sN}, s{sNt[2]}")
    a(f"s_cmp_eq_u32 s{sRole}, 0")
    a(f"s_cbranch_scc1 {N}_g0q2")
    a(f"s_call_b64 s[{sRet}:{sRet+1}], {N}_epi_z1")
    a(f"s_branch {N}_done")
    a.label(f"{N}_g0q2")
    a(f"s_call_b64 s[{sRet}:{sRet+1}], {N}_epi_q")
    a(f"s_branch {N}_done")
    a.label(f"{N}_g1")
    a(f"s_mov_b32 s{sColNext}, s{sCol[1]}")
    st.mark(2)
    a("s_waitcnt vmcnt(10)")
    a("s_barrier")
    for s in range(9):
        normalize(2*s, RING)
        normalize(2*s+1, RING)
        side_sync(s, cond=False)
    st.mark(3)
    a("s_setprio 2")
    a(f"s_mov_b32 s{sRslot}, {WSLOT}")
    a(f"s_cmp_ge_u32 s{sRole}, 2")
    a(f"s_cbranch_scc1 {N}_g1c")
    a(f"s_call_b64 s[{sRet}:{sRet+1}], {N}_main0")
    a(f"s_branch {N}_g1m")
    a.label(f"{N}_g1c")
    a(f"s_call_b64 s[{sRet}:{sRet+1}], {N}_main1")
    a.label(f"{N}_g1m")
    st.mark(4)
    a("s_setprio 0")
    a(f"s_mov_b32 s{sDslot}, {WSLOT}")
    a(f"s_mul_i32 s{sDoff}, s{sStep}, 3")
    a(f"s_add_u32 s{sDoff}, s{sDoff}, s{sCol[2]}")
    a(f"s_mov_b32 s{sColNext}, {OOB}")
    a(f"s_mov_b32 s{sN}, s{sNt[1]}")
    a(f"s_mov_b32 s{sPark}, {PARK1}")
    a(f"s_mov_b32 s{sSync}, 1")
    a(f"s_mov_b32 s{sPub}, 1")
    a(f"s_cmp_eq_u32 s{sRole}, 0")
    a(f"s_cbranch_scc1 {N}_epi_v")
    a(f"s_cmp_eq_u32 s{sRole}, 1")
    a(f"s_cbranch_scc0 {N}_g1z1")
    a(f"s_mov_b32 s{sSync}, 0")
    a(f"s_call_b64 s[{sRet}:{sRet+1}], {N}_epi_z2")
    st.mark(5)
    a("s_waitcnt vmcnt(0)")
    a("s_barrier")
    set_flag()
    a(f"s_call_b64 s[{sRet}:{sRet+1}], {N}_final")
    a(f"s_branch {N}_done")
    a.label(f"{N}_g1z1")
    a(f"s_call_b64 s[{sRet}:{sRet+1}], {N}_epi_z1")
    st.mark(5)
    a(f"s_mov_b32 s{sN}, s{sNt[0]}")
    a(f"s_mov_b32 s{sPark}, {PARK0}")
    a(f"s_call_b64 s[{sRet}:{sRet+1}], {N}_final")
    a.label(f"{N}_done")
    st.mark(6)
    if stamps:
        a("s_waitcnt vmcnt(0)")
    st.mark(7)
    st.dump(8, sW8, vT, vT+1)
    a.label(f"{N}_end")
    a("s_endpgm")

    for orient in range(2):
        a.raw(".p2align 6")
        a.label(f"{N}_main{orient}")
        a(f"v_add_u32 v{vRd}, s{sRslot}, v{vRdB}")
        def rd(gi):
            s, n = divmod(gi, 18)
            kl, b = divmod(n, 9)
            f = RING + (gi % 7) * 4
            for h in range(2):
                a(f"ds_read_b64_tr_b16 v[{f+2*h}:{f+2*h+1}], v{vRd} offset:{kl*10240 + h*1280 + b*32}")
        for gi in range(DLOOK):
            rd(gi)
        for gi in range(162):
            s, n = divmod(gi, 18)
            kl, b = divmod(n, 9)
            ks = 2*s + kl
            if n == 18 - DLOOK:
                a(f"s_add_u32 s{sRslot}, s{sRslot}, {WSLOT}")
                a(f"s_cmp_ge_u32 s{sRslot}, {WSLOT*NRING}")
                a(f"s_cselect_b32 s{sRslot}, 0, s{sRslot}")
                if s < 2:
                    a(f"s_waitcnt vmcnt({5 if s == 0 else 0})")
                a("s_barrier")
                if s < 8:
                    a(f"v_add_u32 v{vRd}, s{sRslot}, v{vRdB}")
            a(f"s_waitcnt lgkmcnt({min(2*(DLOOK-1), 2*(161-gi))})")
            f = RING + (gi % 7) * 4
            for j in range(2):
                C = r4(acc(j, b)) if ks else "0"
                if orient == 0:
                    a(f"v_mfma_f32_16x16x32_bf16 {r4(acc(j,b))}, {r4(xa(j,ks))}, {r4(f)}, {C}")
                else:
                    a(f"v_mfma_f32_16x16x32_bf16 {r4(acc(j,b))}, {r4(f)}, {r4(xa(j,ks))}, {C}")
            if gi + DLOOK < 162:
                rd(gi + DLOOK)
        a("s_nop 7")
        a(f"s_setpc_b64 s[{sRet}:{sRet+1}]")

    def gelu8(A, T):
        for i in range(4):
            a(f"v_pk_mul_f32 v[{T+2*i}:{T+2*i+1}], v[{A+2*i}:{A+2*i+1}], v[{A+2*i}:{A+2*i+1}]")
        for i in range(4):
            a(f"v_pk_fma_f32 v[{T+2*i}:{T+2*i+1}], v[{T+2*i}:{T+2*i+1}], s[{sGC}:{sGC+1}], s[{sGC}:{sGC+1}] op_sel:[0,1,0] op_sel_hi:[1,1,0]")
        for i in range(4):
            a(f"v_pk_mul_f32 v[{T+2*i}:{T+2*i+1}], v[{T+2*i}:{T+2*i+1}], v[{A+2*i}:{A+2*i+1}]")
        for i in range(8):
            a(f"v_exp_f32 v{T+i}, v{T+i}")
        for i in range(4):
            a(f"v_pk_add_f32 v[{T+2*i}:{T+2*i+1}], v[{T+2*i}:{T+2*i+1}], 1.0 op_sel_hi:[1,0]")
        for i in range(8):
            a(f"v_rcp_f32 v{T+i}, v{T+i}")
        for i in range(4):
            a(f"v_pk_mul_f32 v[{A+2*i}:{A+2*i+1}], v[{A+2*i}:{A+2*i+1}], v[{T+2*i}:{T+2*i+1}]")
    def phi8(A, T):
        for i in range(8):
            a(f"v_min_f32 v{T+i}, 0, v{A+i}")
        for i in range(4):
            a(f"v_pk_mul_f32 v[{T+2*i}:{T+2*i+1}], v[{T+2*i}:{T+2*i+1}], s[{sL2E}:{sL2E+1}] op_sel_hi:[1,0]")
        for i in range(8):
            a(f"v_exp_f32 v{T+i}, v{T+i}")
        for i in range(8):
            a(f"v_max_f32 v{A+i}, 0, v{A+i}")
        for i in range(4):
            a(f"v_pk_add_f32 v[{A+2*i}:{A+2*i+1}], v[{A+2*i}:{A+2*i+1}], v[{T+2*i}:{T+2*i+1}]")
        for i in range(4):
            a(f"v_pk_add_f32 v[{A+2*i}:{A+2*i+1}], v[{A+2*i}:{A+2*i+1}], s[{sL2E}:{sL2E+1}] op_sel:[0,1] op_sel_hi:[1,1]")
    def pack8(A, P):
        for i in range(4):
            a(f"v_cvt_pk_bf16_f32 v{P+i}, v{A+2*i}, v{A+2*i+1}")
    TMP = RING
    STA = RING + 8
    sched9 = [[0, 1], [2], [3], [4], [5], [6], [7], [8], []]

    a.raw(".p2align 6")
    a.label(f"{N}_epi_z2")
    a(f"s_lshl_b32 s{sT0}, s{sW4}, 10")
    a(f"s_add_u32 s{sT0}, s{sT0}, s{sPark}")
    a(f"v_lshlrev_b32 v{vT}, 4, v{vLane}")
    a(f"v_add_u32 v{vRd}, s{sT0}, v{vT}")
    for s in range(9):
        for b in sched9[s]:
            A = acc(0, b)
            gelu8(A, TMP)
            for i in range(4):
                if b == 0:
                    a(f"v_pk_mul_f32 v[{STA+8+2*i}:{STA+9+2*i}], v[{A+2*i}:{A+2*i+1}], v[{A+2*i}:{A+2*i+1}]")
                    a(f"v_mov_b32 v{STA+2*i}, v{A+2*i}")
                    a(f"v_mov_b32 v{STA+2*i+1}, v{A+2*i+1}")
                else:
                    a(f"v_pk_fma_f32 v[{STA+8+2*i}:{STA+9+2*i}], v[{A+2*i}:{A+2*i+1}], v[{A+2*i}:{A+2*i+1}], v[{STA+8+2*i}:{STA+9+2*i}]")
                    a(f"v_pk_add_f32 v[{STA+2*i}:{STA+2*i+1}], v[{STA+2*i}:{STA+2*i+1}], v[{A+2*i}:{A+2*i+1}]")
            pack8(A, A)
            a(f"ds_write_b128 v{vRd}, {r4(A)} offset:{b*4096}")
        if s == 8:
            for sh in (8, 4, 2, 1):
                for i in range(16):
                    a(f"v_add_f32_dpp v{STA+i}, v{STA+i}, v{STA+i} row_ror:{sh} row_mask:0xf bank_mask:0xf")
            lane_cg(vT, vT+1)
            for q in range(1, 4):
                a(f"v_cmp_eq_u32 vcc, {q}, v{vT}")
                a("s_nop 1")
                for r in range(4):
                    a(f"v_cndmask_b32 v{STA+r}, v{STA+r}, v{STA+4*q+r}, vcc")
            a(f"v_lshlrev_b32 v{vT+2}, 6, v{vT}")
            a(f"v_lshl_add_u32 v{vT+2}, v{vT+1}, 4, v{vT+2}")
            a(f"v_mov_b32 v{vT+3}, {OOB}")
            a(f"v_cmp_gt_u32 vcc, 4, v{vT}")
            a(f"s_lshl_b32 s{sT0}, s{sM}, 4")
            a(f"s_add_u32 s{sT0}, s{sT0}, s{sN}")
            a(f"v_cndmask_b32 v{vT+2}, v{vT+3}, v{vT+2}, vcc")
            a(f"s_lshl_b32 s{sT0}, s{sT0}, 2")
            a(f"s_add_u32 s{sT0}, s{sT0}, s{sW4}")
            a(f"s_lshl_b32 s{sT0}, s{sT0}, 8")
            a(f"s_add_u32 s{sT0}, s{sT0}, {WS_ST}")
            a(f"buffer_store_dwordx4 {r4(STA)}, v{vT+2}, s[12:15], s{sT0} offen sc1")
        side_sync(s, nvm=(6 if s == 8 else 5), lgkm=(s >= 7))
    a(f"s_setpc_b64 s[{sRet}:{sRet+1}]")

    a.raw(".p2align 6")
    a.label(f"{N}_epi_k")
    a(f"s_lshl_b32 s{sT0}, s{sW4}, 10")
    a(f"s_add_u32 s{sT0}, s{sT0}, s{sPark}")
    a(f"v_lshlrev_b32 v{vT}, 4, v{vLane}")
    a(f"v_add_u32 v{vRd}, s{sT0}, v{vT}")
    for s in range(9):
        A = acc(0, s)
        phi8(A, TMP)
        pack8(A, A)
        a(f"ds_write_b128 v{vRd}, {r4(A)} offset:{s*4096}")
        side_sync(s, cond=False, lgkm=(s == 8))
    a(f"s_setpc_b64 s[{sRet}:{sRet+1}]")

    a.raw(".p2align 6")
    a.label(f"{N}_epi_z1")
    a(f"s_lshl_b32 s{sT2}, s{sM}, 4")
    a(f"s_add_u32 s{sT2}, s{sT2}, s{sN}")
    a(f"s_lshl_b32 s{sT2}, s{sT2}, 2")
    a(f"s_add_u32 s{sT2}, s{sT2}, s{sW4}")
    a(f"s_mul_i32 s{sT2}, s{sT2}, 9216")
    a(f"s_add_u32 s{sT2}, s{sT2}, {WS_Z1}")
    a(f"v_lshlrev_b32 v{vRd}, 4, v{vLane}")
    for s in range(9):
        A = acc(0, s)
        gelu8(A, TMP)
        pack8(A, A)
        if s % 4 == 0 and s:
            a(f"s_add_u32 s{sT2}, s{sT2}, 4096")
        a(f"buffer_store_dwordx4 {r4(A)}, v{vRd}, s[12:15], s{sT2} offen offset:{(s%4)*1024}")
        if s == 2:
            L = a.uid(f"{N}_np")
            a(f"s_cmp_eq_u32 s{sPub}, 0")
            a(f"s_cbranch_scc1 {L}")
            set_flag()
            a.label(L)
        side_sync(s, nvm=(7 if s not in (0,) else 6))
    a(f"s_setpc_b64 s[{sRet}:{sRet+1}]")

    a.raw(".p2align 6")
    a.label(f"{N}_epi_q")
    lane_cg(vT, vT+1)
    a(f"v_lshlrev_b32 v{vRd}, 6, v{vT}")
    a(f"v_lshl_add_u32 v{vRd}, v{vT+1}, 4, v{vRd}")
    a(f"s_mul_i32 s{sT2}, s{sN}, {5*PLANE}")
    a(f"s_lshl_b32 s{sT3}, s{sM}, 13")
    a(f"s_add_u32 s{sT2}, s{sT2}, s{sT3}")
    a(f"s_lshl_b32 s{sT3}, s{sW4}, 11")
    a(f"s_add_u32 s{sT2}, s{sT2}, s{sT3}")
    a(f"s_add_u32 s{sT2}, s{sT2}, {WS_PQ}")
    QO = RING + 8
    for p in range(5):
        Q = QO + (p % 2) * 8
        for h in range(2):
            b = 2*p + h
            if b < 9:
                A = acc(0, b)
                phi8(A, TMP)
                for j in range(2):
                    a(f"v_cvt_pk_bf16_f32 v{Q+j*4+h*2}, v{A+j*4}, v{A+j*4+1}")
                    a(f"v_cvt_pk_bf16_f32 v{Q+j*4+h*2+1}, v{A+j*4+2}, v{A+j*4+3}")
            else:
                for j in range(2):
                    a(f"v_mov_b32 v{Q+j*4+2}, 0")
                    a(f"v_mov_b32 v{Q+j*4+3}, 0")
        for j in range(2):
            swap_pair(a, Q + j*4)
            a(f"buffer_store_dwordx4 {r4(Q+j*4)}, v{vRd}, s[12:15], s{sT2} offen offset:{j*1024}")
        a(f"s_add_u32 s{sT2}, s{sT2}, {PLANE}")
    a(f"s_setpc_b64 s[{sRet}:{sRet+1}]")

    a.raw(".p2align 6")
    a.label(f"{N}_final")
    a(f"s_lshl_b32 s{sT0}, s{sM}, 4")
    a(f"v_mov_b32 v{vT}, 0")
    a(f"s_mov_b32 s{sSpin}, 0")
    a.label(f"{N}_fpoll")
    a(f"buffer_load_dwordx4 {r4(TMP)}, v{vT}, s[16:19], s{sT0} offen sc1")
    a(f"s_add_u32 s{sSpin}, s{sSpin}, 1")
    a("s_waitcnt vmcnt(0)")
    a(f"v_and_b32 v{TMP}, v{TMP}, v{TMP+1}")
    a(f"v_and_b32 v{TMP+2}, v{TMP+2}, v{TMP+3}")
    a(f"v_and_b32 v{TMP}, v{TMP}, v{TMP+2}")
    a("s_nop 0")
    a(f"v_readfirstlane_b32 s{sT1}, v{TMP}")
    a(f"s_cmp_gt_u32 s{sSpin}, 0x40000")
    a(f"s_cbranch_scc1 {N}_fgo")
    a(f"s_and_b32 s{sT1}, s{sT1}, 0x01010100")
    a(f"s_cmp_eq_u32 s{sT1}, 0x01010100")
    a(f"s_cbranch_scc1 {N}_fgo")
    a("s_sleep 4")
    a(f"s_branch {N}_fpoll")
    a.label(f"{N}_fgo")
    lane_cg(vT, vT+1)
    a(f"v_lshlrev_b32 v{vT+2}, 10, v{vT}")
    a(f"v_lshl_add_u32 v{vT+2}, v{vT+1}, 4, v{vT+2}")
    a(f"s_lshl_b32 s{sT0}, s{sM}, 14")
    a(f"s_lshl_b32 s{sT1}, s{sW4}, 8")
    a(f"s_add_u32 s{sT0}, s{sT0}, s{sT1}")
    a(f"s_add_u32 s{sT0}, s{sT0}, {WS_ST}")
    for q in range(4):
        a(f"buffer_load_dwordx4 {r4(STA+4*q)}, v{vT+2}, s[12:15], s{sT0} offen offset:{q*64} sc1")
    a(f"s_lshl_b32 s{sT0}, s{sW4}, 10")
    a(f"s_add_u32 s{sT0}, s{sT0}, s{sPark}")
    a(f"v_lshlrev_b32 v{vT+2}, 4, v{vLane}")
    a(f"v_add_u32 v{vRd}, s{sT0}, v{vT+2}")
    for b in range(9):
        a(f"ds_read_b128 {r4(ACC+4*b)}, v{vRd} offset:{b*4096}")
    a(f"s_and_b32 s{sT1}, s{sW4}, 1")
    a(f"s_lshl_b32 s{sT1}, s{sT1}, 2")
    a(f"v_or_b32 v{vT+1}, s{sT1}, v{vT+1}")
    a(f"v_and_b32 v{vT+2}, 7, v{vT}")
    a(f"v_xor_b32 v{vT+1}, v{vT+1}, v{vT+2}")
    a(f"v_lshlrev_b32 v{vT+1}, 4, v{vT+1}")
    a(f"v_lshl_add_u32 v{vRd}, v{vT}, 7, v{vT+1}")
    a(f"s_lshl_b32 s{sT0}, s{sN}, 5")
    a(f"s_lshl_b32 s{sT1}, s{sM}, 1")
    a(f"s_add_u32 s{sT0}, s{sT0}, s{sT1}")
    a(f"s_lshr_b32 s{sT1}, s{sW4}, 1")
    a(f"s_add_u32 s{sT0}, s{sT0}, s{sT1}")
    a(f"s_mul_i32 s{sT0}, s{sT0}, 18432")
    a(f"s_add_u32 s{sT0}, s{sT0}, {WS_Z2T}")
    a("s_waitcnt vmcnt(0)")
    for sh in (8, 4, 2, 1):
        for i in range(16):
            a(f"v_add_f32_dpp v{STA+i}, v{STA+i}, v{STA+i} row_ror:{sh} row_mask:0xf bank_mask:0xf")
    RS = ACC + 40
    inv = f2h(1.0/2304)
    for i in range(8):
        a(f"v_mul_f32 v{STA+i}, {inv}, v{STA+i}")
        a(f"v_mul_f32 v{STA+8+i}, {inv}, v{STA+8+i}")
        a(f"v_fma_f32 v{STA+8+i}, -v{STA+i}, v{STA+i}, v{STA+8+i}")
        a(f"v_max_f32 v{STA+8+i}, 0, v{STA+8+i}")
        a(f"v_add_f32 v{STA+8+i}, 0x3727c5ac, v{STA+8+i}")
        a(f"v_rsq_f32 v{RS+i}, v{STA+8+i}")
    for i in range(8):
        a(f"v_mul_f32 v{RS+8+i}, v{STA+i}, v{RS+i}")
        a(f"v_sub_f32 v{RS+8+i}, 0, v{RS+8+i}")
    a("s_waitcnt lgkmcnt(0)")
    for b in range(9):
        P = ACC + 4*b
        for i in range(4):
            a(f"v_lshlrev_b32 v{TMP+2*i}, 16, v{P+i}")
            a(f"v_and_b32 v{TMP+2*i+1}, 0xffff0000, v{P+i}")
        for i in range(4):
            a(f"v_pk_fma_f32 v[{TMP+2*i}:{TMP+2*i+1}], v[{TMP+2*i}:{TMP+2*i+1}], v[{RS+2*i}:{RS+2*i+1}], v[{RS+8+2*i}:{RS+9+2*i}]")
        pack8(TMP, P)
        swap_pair(a, P)
        a(f"buffer_store_dwordx4 {r4(P)}, v{vRd}, s[12:15], s{sT0} offen offset:{(b%2)*2048}")
        if b % 2:
            a(f"s_add_u32 s{sT0}, s{sT0}, 4096")
    a(f"s_setpc_b64 s[{sRet}:{sRet+1}]")

    a.raw(".p2align 6")
    a.label(f"{N}_epi_v")
    a(f"s_lshl_b32 s{sT0}, s{sW4}, 10")
    a(f"s_add_u32 s{sT0}, s{sT0}, {PARK1}")
    a(f"v_lshlrev_b32 v{vT}, 4, v{vLane}")
    a(f"v_add_u32 v{vRd}, s{sT0}, v{vT}")
    for b in range(9):
        A = acc(0, b)
        pack8(A, A)
        a(f"ds_write_b128 v{vRd}, {r4(A)} offset:{b*4096}")
    side_sync(0, cond=False, lgkm=True)
    PK = XA; VV = XA + 64; KA = ACC
    a(f"s_lshl_b32 s{sT0}, s{sW4}, 13")
    a(f"s_add_u32 s{sT1}, s{sT0}, {PARK0-4096}")
    a(f"v_add_u32 v{vT+1}, s{sT1}, v{vT}")
    a(f"s_add_u32 s{sT1}, s{sT0}, {PARK1}")
    a(f"v_add_u32 v{vT+2}, s{sT1}, v{vT}")
    for i in range(16):
        a(f"ds_read_b128 {r4(PK+4*i)}, v{vT+1} offset:{i*1024}")
        if i == 11:
            a("s_waitcnt lgkmcnt(0)")
    a("s_waitcnt lgkmcnt(0)")
    for i in range(12):
        a(f"ds_read_b128 {r4(VV+4*i)}, v{vT+2} offset:{i*1024}")
    ON = RING
    for r in range(4):
        a(f"v_mov_b32 v{ON+r}, 0x3f803f80")
    a("s_waitcnt lgkmcnt(0)")
    side_sync(1, cond=False)
    blocks = [(0,0),(1,0),(2,0),(1,1),(2,1),(3,1),(2,2),(3,2)]
    for rg in range(4):
        for i, (pa, vb) in enumerate(blocks):
            C = r4(KA+4*i) if rg else "0"
            a(f"v_mfma_f32_16x16x32_bf16 {r4(KA+4*i)}, {r4(PK+(pa*4+rg)*4)}, {r4(VV+(vb*4+rg)*4)}, {C}")
        for i in range(3):
            C = r4(KA+32+4*i) if rg else "0"
            a(f"v_mfma_f32_16x16x32_bf16 {r4(KA+32+4*i)}, {r4(PK+((1+i)*4+rg)*4)}, {r4(ON)}, {C}")
        if rg == 1:
            side_sync(2, cond=False)
    a(f"s_lshl_b32 s{sT0}, s{sCG}, 4")
    a(f"s_add_u32 s{sT0}, s{sT0}, s{sM}")
    a(f"s_mul_i32 s{sT0}, s{sT0}, 36864")
    a(f"s_add_u32 s{sT0}, s{sT0}, {WS_KVP}")
    a(f"s_mul_i32 s{sT1}, s{sW4}, 6144")
    a(f"s_add_u32 s{sT1}, s{sT1}, s{sT0}")
    a(f"s_lshl_b32 s{sT2}, s{sW4}, 11")
    a(f"s_add_u32 s{sT2}, s{sT2}, s{sT0}")
    a(f"s_add_u32 s{sT2}, s{sT2}, {27*1024}")
    a("s_nop 4")
    for i in range(6):
        if i == 4:
            a(f"s_add_u32 s{sT1}, s{sT1}, 4096")
        a(f"buffer_store_dwordx4 {r4(KA+4*i)}, v{vT}, s[12:15], s{sT1} offen offset:{(i%4)*1024} sc1")
    for i in range(2):
        a(f"buffer_store_dwordx4 {r4(KA+32+4*i)}, v{vT}, s[12:15], s{sT2} offen offset:{i*1024} sc1")
    a(f"s_cmp_lg_u32 s{sW4}, 3")
    a(f"s_cbranch_scc1 {N}_kv3")
    for i in range(2):
        a(f"buffer_store_dwordx4 {r4(KA+24+4*i)}, v{vT}, s[12:15], s{sT1} offen offset:{2048+i*1024} sc1")
    a(f"buffer_store_dwordx4 {r4(KA+40)}, v{vT}, s[12:15], s{sT2} offen offset:2048 sc1")
    a.label(f"{N}_kv3")
    side_sync(3, nvm=0, cond=False)
    set_flag()
    for s in range(4, 9):
        side_sync(s, cond=False)
    st.mark(5)
    a(f"s_cmp_ge_u32 s{sM}, 9")
    a(f"s_cbranch_scc1 {N}_done")
    lane_cg(vT+1, vT+2)
    a(f"v_lshlrev_b32 v{TMP}, 4, v{vT+1}")
    a(f"s_lshl_b32 s{sT0}, s{sCG}, 2")
    a(f"s_mov_b32 s{sSpin}, 0")
    a.label(f"{N}_kpoll")
    a(f"buffer_load_ubyte v{TMP+1}, v{TMP}, s[16:19], s{sT0} offen sc1")
    a(f"s_add_u32 s{sSpin}, s{sSpin}, 1")
    a("s_waitcnt vmcnt(0)")
    a(f"v_cmp_eq_u32 vcc, 1, v{TMP+1}")
    a(f"s_cmp_gt_u32 s{sSpin}, 0x40000")
    a(f"s_cbranch_scc1 {N}_kgo")
    a("s_cmp_eq_u64 vcc, -1")
    a(f"s_cbranch_scc1 {N}_kgo")
    a("s_sleep 4")
    a(f"s_branch {N}_kpoll")
    a.label(f"{N}_kgo")
    tab = 0
    for b in range(9):
        tab |= PB[b] << (2*b)
    a(f"s_lshl_b32 s{sT0}, s{sM}, 1")
    a(f"s_lshr_b32 s{sT0}, {tab:#x}, s{sT0}")
    a(f"s_and_b32 s{sT0}, s{sT0}, 3")
    a(f"s_and_b32 s{sT1}, s{sW4}, 1")
    a(f"s_add_u32 s{sT0}, s{sT0}, s{sT1}")
    a(f"s_lshl_b32 s{sT0}, s{sT0}, 1")
    a(f"s_mul_i32 s{sT4}, s{sCG}, {16*36864}")
    a(f"s_add_u32 s{sT4}, s{sT4}, {WS_KVP}")
    LD = XA
    for h in range(2):
        a(f"s_add_u32 s{sT1}, s{sT0}, {h}")
        a(f"s_sub_u32 s{sT2}, s{sT1}, s{sM}")
        a(f"s_add_u32 s{sT2}, s{sT2}, 1")
        a(f"s_mul_i32 s{sT3}, s{sM}, 3")
        a(f"s_add_u32 s{sT3}, s{sT3}, s{sT2}")
        a(f"s_add_u32 s{sPub}, s{sT1}, 27")
        a(f"s_cmp_ge_u32 s{sW4}, 2")
        a(f"s_cselect_b32 s{sT3}, s{sPub}, s{sT3}")
        a(f"s_lshl_b32 s{sT3}, s{sT3}, 10")
        a(f"s_add_u32 s{sT3}, s{sT3}, s{sT4}")
        a(f"s_cmp_lt_u32 s{sT2}, 3")
        a(f"s_cselect_b32 s{sT3}, s{sT3}, {OOB}")
        a(f"s_cmp_lt_u32 s{sT1}, 9")
        a(f"s_cselect_b32 s{sT3}, s{sT3}, {OOB}")
        for mm in range(16):
            a(f"buffer_load_dwordx4 {r4(LD+(h*16+mm)*4)}, v{vT}, s[12:15], s{sT3} offen sc1")
            a(f"s_add_u32 s{sT3}, s{sT3}, 36864")
    a(f"s_lshl_b32 s{sT1}, s{sM}, 4")
    a(f"v_add_u32 v{TMP}, s{sT1}, v{vT+1}")
    a(f"v_mul_u32_u24 v{TMP}, 3641, v{TMP}")
    a(f"v_lshrrev_b32 v{TMP}, 16, v{TMP}")
    a(f"s_lshl_b32 s{sT1}, s{sT0}, 4")
    a(f"v_lshlrev_b32 v{TMP+1}, 2, v{vT+2}")
    a(f"v_add_u32 v{TMP+1}, s{sT1}, v{TMP+1}")
    for h in range(2):
        for mm in range(1, 16):
            a(f"s_waitcnt vmcnt({31 - (h*16+mm)})")
            for i in range(2):
                a(f"v_pk_add_f32 v[{LD+h*64+2*i}:{LD+h*64+2*i+1}], v[{LD+h*64+2*i}:{LD+h*64+2*i+1}], v[{LD+(h*16+mm)*4+2*i}:{LD+(h*16+mm)*4+2*i+1}]")
        for r in range(4):
            a(f"v_add_u32 v{TMP+2}, {16*h+r}, v{TMP+1}")
            a(f"v_mul_u32_u24 v{TMP+2}, 3641, v{TMP+2}")
            a(f"v_lshrrev_b32 v{TMP+2}, 16, v{TMP+2}")
            a(f"v_cmp_eq_u32 vcc, v{TMP+2}, v{TMP}")
            a("s_nop 1")
            a(f"v_cndmask_b32 v{LD+h*64+r}, 0, v{LD+h*64+r}, vcc")
        a(f"v_cvt_pk_bf16_f32 v{STA+2*h}, v{LD+h*64}, v{LD+h*64+1}")
        a(f"v_cvt_pk_bf16_f32 v{STA+2*h+1}, v{LD+h*64+2}, v{LD+h*64+3}")
    swap_pair(a, STA)
    a(f"s_mul_i32 s{sT1}, s{sCG}, 36864")
    a(f"s_lshl_b32 s{sT2}, s{sM}, 12")
    a(f"s_add_u32 s{sT1}, s{sT1}, s{sT2}")
    a(f"s_lshl_b32 s{sT2}, s{sW4}, 10")
    a(f"s_add_u32 s{sT1}, s{sT1}, s{sT2}")
    a(f"s_add_u32 s{sT1}, s{sT1}, {WS_KVF}")
    a(f"buffer_store_dwordx4 {r4(STA)}, v{vT}, s[12:15], s{sT1} offen")
    a(f"s_branch {N}_done")
    return NV
```

```python
from asmlib import *
from layout import *

SLOT = 34816
NSLOT = 4
K2_LDS = SLOT * NSLOT

def r4(x): return f"v[{x}:{x+3}]"

def swap_pair(a, Q):
    a("s_nop 1")
    a(f"v_permlane32_swap_b32 v{Q}, v{Q+2}")
    a(f"v_permlane32_swap_b32 v{Q+1}, v{Q+3}")
    a("s_nop 0")
    a(f"v_permlane16_swap_b32 v{Q}, v{Q+2}")
    a(f"v_permlane16_swap_b32 v{Q+1}, v{Q+3}")

def gen_k2(a, name="k2_kernel", side=True, stamps=False):
    st = Stamps(a, stamps, 1)
    ACC = 0
    FR = 72
    Z1R = 160
    vW0, vW1, vZ0, vZ1 = 196, 197, 198, 199
    bW0, bW1, bZ0, bZ1 = 200, 201, 202, 203
    vT0, vT1, vT2, vT3 = 204, 205, 206, 207
    vLane, vC, vG = 208, 209, 210
    vSt, vSt1 = 211, 212
    vBias0, vBias1 = 214, 215
    NV = 216
    def acc(j, b): return ACC + (j*9+b)*4
    def frW(s, j): return FR + s*44 + j*4
    def frZ(s, b): return FR + s*44 + 8 + b*4
    kernel_header(a, name)
    a("s_cmp_ge_u32 s2, 256")
    a(f"s_cbranch_scc1 {name}_end")
    st.mark(0)
    a("s_load_dwordx4 s[4:7], s[0:1], 40")
    a("s_load_dwordx2 s[8:9], s[0:1], 80")
    a(f"v_lshrrev_b32 v{vT0}, 6, v0")
    a(f"v_and_b32 v{vLane}, 63, v0")
    a(f"v_readfirstlane_b32 s29, v{vT0}")
    a("s_and_b32 s24, s2, 7")
    a("s_lshr_b32 s25, s2, 3")
    a("s_and_b32 s26, s24, 1")
    a("s_lshl_b32 s26, s26, 3")
    a("s_and_b32 s27, s25, 7")
    a("s_add_u32 s26, s26, s27")
    a("s_lshr_b32 s27, s24, 1")
    a("s_lshl_b32 s27, s27, 2")
    a("s_lshr_b32 s28, s25, 3")
    a("s_add_u32 s27, s27, s28")
    a("s_lshl_b32 s30, s24, 2")
    a(f"v_and_b32 v{vC}, 15, v{vLane}")
    a(f"v_lshrrev_b32 v{vG}, 4, v{vLane}")
    a(f"v_lshrrev_b32 v{vT0}, 2, v{vC}")
    a(f"v_sub_u32 v{vT0}, 0, v{vT0}")
    a(f"v_and_b32 v{vT0}, 3, v{vT0}")
    a(f"v_xor_b32 v{vT1}, v{vT0}, v{vG}")
    a(f"v_lshlrev_b32 v{vT1}, 4, v{vT1}")
    a(f"v_lshl_add_u32 v{vSt}, v{vC}, 6, v{vT1}")
    a(f"v_lshrrev_b32 v{vT1}, 1, v{vG}")
    a(f"v_xor_b32 v{vT1}, v{vT0}, v{vT1}")
    a(f"v_lshlrev_b32 v{vT1}, 4, v{vT1}")
    a(f"v_lshl_add_u32 v{vSt1}, v{vC}, 6, v{vT1}")
    a(f"v_and_b32 v{vT1}, 1, v{vG}")
    a(f"v_lshl_add_u32 v{vSt1}, v{vT1}, 3, v{vSt1}")
    a("s_waitcnt lgkmcnt(0)")
    srd(a, 12, 4, S*S*2)
    srd(a, 16, 8, WS_END)
    srd(a, 20, 6, S*2)
    a("s_cmp_ge_u32 s29, 4")
    a(f"s_cbranch_scc1 {name}_loader")
    a("s_lshl_b32 s32, s26, 7")
    a("s_lshl_b32 s33, s29, 5")
    a("s_add_u32 s32, s32, s33")
    a(f"v_add_u32 v{vT1}, s32, v{vC}")
    a(f"v_lshlrev_b32 v{vT2}, 1, v{vT1}")
    a(f"buffer_load_ushort v{vBias0}, v{vT2}, s[20:23], 0 offen")
    a(f"buffer_load_ushort v{vBias1}, v{vT2}, s[20:23], 0 offen offset:32")
    a("s_lshl_b32 s31, s26, 4")
    a("s_add_u32 s31, s31, s27")
    a("s_lshl_b32 s31, s31, 2")
    a("s_add_u32 s31, s31, s29")
    a("s_mul_i32 s31, s31, 9216")
    a(f"s_add_u32 s31, s31, {WS_Z1}")
    a("s_mul_i32 s35, s27, 9")
    a("s_lshr_b32 s35, s35, 1")
    a(f"s_mul_i32 s35, s35, {PLANE}")
    a("s_lshl_b32 s33, s32, 6")
    a("s_add_u32 s35, s35, s33")
    a(f"s_add_u32 s35, s35, {WS_HO}")
    a(f"v_and_b32 v{vT0}, 7, v{vC}")
    a(f"v_xor_b32 v{vT0}, v{vT0}, v{vG}")
    a(f"v_lshlrev_b32 v{vT0}, 4, v{vT0}")
    a(f"v_lshl_add_u32 v{vT0}, v{vC}, 7, v{vT0}")
    a(f"v_xor_b32 v{vT2}, 64, v{vT0}")
    a("s_lshl_b32 s33, s29, 12")
    a(f"v_add_u32 v{bW0}, s33, v{vT0}")
    a(f"v_add_u32 v{bW1}, s33, v{vT2}")
    a(f"v_add_u32 v{bZ0}, 16384, v{vT0}")
    a(f"v_add_u32 v{bZ1}, 16384, v{vT2}")
    a(f"v_lshlrev_b32 v{vT3}, 4, v{vLane}")
    a("s_waitcnt vmcnt(0)")
    a(f"v_lshlrev_b32 v{vBias0}, 16, v{vBias0}")
    a(f"v_lshlrev_b32 v{vBias1}, 16, v{vBias1}")
    for j in range(2):
        for i in range(36):
            a(f"v_mov_b32 v{ACC+j*36+i}, v{vBias0+j}")
    a("s_mov_b32 s36, 0")
    st.mark(1)
    a("s_barrier")
    st.mark(2)
    def reads(s, vW, vZ):
        L = [f"ds_read_b128 {r4(frW(s,j))}, v{vW} offset:{j*2048}" for j in range(2)]
        L += [f"ds_read_b128 {r4(frZ(s,b))}, v{vZ} offset:{b*2048}" for b in range(9)]
        return L
    for r in reads(0, bW0, bZ0):
        a(r)
    a("s_mov_b32 s37, 32")
    a.raw(".p2align 6")
    a.label(f"{name}_loop")
    def half(su, rl):
        idx = 0
        for b in range(9):
            for j in range(2):
                if j == 0:
                    a(f"s_waitcnt lgkmcnt({8-b+min(idx,11)})")
                a(f"v_mfma_f32_16x16x32_bf16 {r4(acc(j,b))}, {r4(frZ(su,b))}, {r4(frW(su,j))}, {r4(acc(j,b))}")
                if idx < 11:
                    a(rl[idx])
                idx += 1
    a(f"v_add_u32 v{vW1}, s36, v{bW1}")
    a(f"v_add_u32 v{vZ1}, s36, v{bZ1}")
    a(f"s_add_u32 s36, s36, {SLOT}")
    a(f"s_cmp_ge_u32 s36, {K2_LDS}")
    a("s_cselect_b32 s36, 0, s36")
    a(f"v_add_u32 v{vW0}, s36, v{bW0}")
    a(f"v_add_u32 v{vZ0}, s36, v{bZ0}")
    half(0, reads(1, vW1, vZ1))
    a("s_barrier")
    half(1, reads(0, vW0, vZ0))
    a("s_sub_u32 s37, s37, 1")
    a("s_cmp_lg_u32 s37, 3")
    a(f"s_cbranch_scc1 {name}_noz1")
    for i in range(9):
        if i % 4 == 0 and i:
            a("s_add_u32 s31, s31, 4096")
        a(f"buffer_load_dwordx4 {r4(Z1R+4*i)}, v{vT3}, s[16:19], s31 offen offset:{(i%4)*1024}")
    a.label(f"{name}_noz1")
    a("s_cmp_lg_u32 s37, 0")
    a(f"s_cbranch_scc1 {name}_loop")
    st.mark(3)
    a("s_waitcnt vmcnt(0) lgkmcnt(0)")
    a("s_bitcmp1_b32 s27, 0")
    a(f"s_cbranch_scc1 {name}_epi1")
    for par in range(2):
        if par:
            a.label(f"{name}_epi1")
            a(f"v_xor_b32 v{vSt1}, 32, v{vSt1}")
        for j in range(2):
            for b in range(9):
                A = acc(j, b); P = FR + (j*9+b)*2; Z = Z1R + b*4 + j*2
                for h in range(2):
                    a(f"v_lshlrev_b32 v{vT0}, 16, v{Z+h}")
                    a(f"v_and_b32 v{vT1}, 0xffff0000, v{Z+h}")
                    a(f"v_pk_mul_f32 v[{A+2*h}:{A+2*h+1}], v[{A+2*h}:{A+2*h+1}], v[{vT0}:{vT1}]")
                    a(f"v_cvt_pk_bf16_f32 v{P+h}, v{A+2*h}, v{A+2*h+1}")
                single = (b == (0 if par else 8))
                if single:
                    pl = 0 if par else 4
                    a(f"s_add_u32 s34, s35, {pl*PLANE + j*1024}")
                    a(f"buffer_store_dwordx2 v[{P}:{P+1}], v{vSt1}, s[16:19], s34 offen")
                elif (b + par) % 2 == 1 - 0 and (b - par) % 2 == 1:
                    Q = P - 2
                    pl = (b + par) // 2
                    a(f"s_add_u32 s34, s35, {pl*PLANE + j*1024}")
                    swap_pair(a, Q)
                    a(f"buffer_store_dwordx4 v[{Q}:{Q+3}], v{vSt}, s[16:19], s34 offen")
        st.mark(4)
        if stamps:
            a("s_waitcnt vmcnt(0)")
        st.mark(5)
        st.dump(6, 29, vT0, vT1)
        a("s_endpgm")
    a.label(f"{name}_loader")
    a(f"v_lshrrev_b32 v{vT0}, 3, v{vLane}")
    a(f"v_and_b32 v{vT1}, 7, v{vLane}")
    a(f"v_xor_b32 v{vT1}, v{vT1}, v{vT0}")
    a(f"v_lshlrev_b32 v{vT1}, 4, v{vT1}")
    a("s_lshl_b32 s31, s26, 7")
    a(f"v_add_u32 v{vT0}, s31, v{vT0}")
    LW = 196
    a(f"v_lshl_add_u32 v{LW}, v{vT0}, 12, v{vT1}")
    for p in range(1, 4):
        a(f"v_add_u32 v{LW+p}, {p*(32768-1024)}, v{LW}")
    a(f"v_lshlrev_b32 v{LW+4}, 4, v{vLane}")
    a(f"s_mul_i32 s32, s27, {32*18432}")
    a(f"s_add_u32 s32, s32, {WS_Z2T}")
    a("s_mov_b32 s36, 0")
    a("s_cmp_eq_u32 s29, 5")
    a(f"s_cbranch_scc1 {name}_loader1")
    for L in range(2):
        if L == 1:
            a.label(f"{name}_loader1")
        def issue():
            a("s_lshl_b32 s33, s30, 7")
            a("s_mul_i32 s34, s30, 18432")
            a("s_add_u32 s34, s34, s32")
            if L == 0:
                for g in range(4):
                    a(f"s_add_u32 m0, s36, {g*4096}")
                    if g:
                        a("s_add_u32 s33, s33, 131072")
                    else:
                        a("s_nop 0")
                    for p in range(4):
                        a(f"buffer_load_dwordx4 v{LW+p}, s[12:15], s33 offen offset:{p*1024} lds")
                a(f"s_add_u32 m0, s36, {16384+16384}")
                a("s_add_u32 s34, s34, 16384")
                a(f"buffer_load_dwordx4 v{LW+4}, s[16:19], s34 offen offset:1024 lds")
            else:
                for g in range(5):
                    a(f"s_add_u32 m0, s36, {16384+g*4096}")
                    if g:
                        a("s_add_u32 s34, s34, 4096")
                    else:
                        a("s_nop 0")
                    for p in range(4 if g < 4 else 1):
                        a(f"buffer_load_dwordx4 v{LW+4}, s[16:19], s34 offen offset:{p*1024} lds")
            a("s_add_u32 s30, s30, 1")
            a("s_and_b32 s30, s30, 31")
            a(f"s_add_u32 s36, s36, {SLOT}")
            a(f"s_cmp_ge_u32 s36, {K2_LDS}")
            a("s_cselect_b32 s36, 0, s36")
        issue()
        issue()
        a("s_waitcnt vmcnt(17)")
        a("s_barrier")
        issue()
        a("s_mov_b32 s37, 29")
        a.label(f"{name}_lloop{L}")
        a("s_waitcnt vmcnt(17)")
        a("s_barrier")
        issue()
        a("s_sub_u32 s37, s37, 1")
        a("s_cmp_lg_u32 s37, 0")
        a(f"s_cbranch_scc1 {name}_lloop{L}")
        if L == 0:
            a(f"s_branch {name}_ltail")
    a.label(f"{name}_ltail")
    nside = gen_side_loads(a, FR=0, vLane=vLane, vC=vC, vG=vG, vT=LW) if side else 0
    a(f"s_waitcnt vmcnt({17+nside})")
    a("s_barrier")
    a(f"s_waitcnt vmcnt({nside})")
    a("s_barrier")
    a("s_barrier")
    if side:
        gen_side_compute(a, name, FR=0, vSt=vSt, vSt1=vSt1)
    a.label(f"{name}_end")
    a("s_endpgm")
    return NV

def _sKV(FR, t, f): return FR + (t*4+f)*4
def _sPQ(FR, t, j, k): return FR + 80 + (t*4+j*2+k)*4
def _sAC(FR, j, mat): return FR + 160 + (j*2+mat)*4
_sO = 176

def gen_side_loads(a, FR, vLane, vC, vG, vT):
    a("s_lshr_b32 s40, s2, 2")
    a("s_and_b32 s41, s2, 3")
    a("s_and_b32 s42, s41, 1")
    a("s_sub_u32 s43, s29, 4")
    a("s_lshl_b32 s44, s43, 2")
    a("s_add_u32 s44, s44, s42")
    a("s_mul_i32 s45, s41, 36864")
    a(f"s_add_u32 s45, s45, {WS_KVF}")
    a(f"s_mul_i32 s46, s41, {5*PLANE}")
    a("s_lshl_b32 s47, s40, 11")
    a("s_add_u32 s46, s46, s47")
    a(f"s_add_u32 s46, s46, {WS_PQ}")
    a(f"v_lshlrev_b32 v{vT}, 4, v{vLane}")
    a(f"v_lshlrev_b32 v{vT+1}, 6, v{vC}")
    a(f"v_lshl_add_u32 v{vT+1}, v{vG}, 4, v{vT+1}")
    tab = 0
    for b in range(9):
        tab |= PB[b] << (2*b)
    n = 0
    for t in range(5):
        if t == 4:
            a("s_cmp_eq_u32 s42, 0")
            a("s_cselect_b32 s48, 8, 0")
        else:
            a(f"s_add_u32 s48, s44, {t}")
        a("s_lshl_b32 s49, s48, 12")
        a("s_add_u32 s49, s49, s45")
        for f in range(4):
            a(f"buffer_load_dwordx4 {r4(_sKV(FR,t,f))}, v{vT}, s[16:19], s49 offen offset:{f*1024}")
        a("s_lshl_b32 s50, s48, 1")
        a(f"s_lshr_b32 s50, {tab:#x}, s50")
        a("s_and_b32 s50, s50, 3")
        a(f"s_mul_i32 s50, s50, {PLANE}")
        a("s_add_u32 s50, s50, s46")
        for k in range(2):
            for j in range(2):
                a(f"buffer_load_dwordx4 {r4(_sPQ(FR,t,j,k))}, v{vT+1}, s[16:19], s50 offen offset:{j*1024}")
            if k == 0:
                a(f"s_add_u32 s50, s50, {PLANE}")
        n += 8
    return n

def gen_side_compute(a, name, FR, vSt, vSt1):
    a("s_mul_i32 s51, s41, 9")
    a("s_lshr_b32 s51, s51, 1")
    a("s_add_u32 s51, s51, 72")
    a(f"s_mul_i32 s51, s51, {PLANE}")
    a("s_add_u32 s51, s51, s47")
    a(f"s_add_u32 s51, s51, {WS_HO}")
    a("s_lshl_b32 s52, s43, 1")
    a("s_add_u32 s52, s52, s42")
    a(f"s_mul_i32 s52, s52, {PLANE}")
    a("s_add_u32 s52, s52, s51")
    a("s_mov_b32 s53, 0x358637bd")
    for t in range(5):
        if t == 4:
            a("s_cmp_lg_u32 s43, 0")
            a(f"s_cbranch_scc1 {name}_end")
        a(f"s_waitcnt vmcnt({(4-t)*8 + (2 if t in (2,3) else 0) + (4 if t == 4 else 0) - (0)})")
        for j in range(2):
            for mat in range(2):
                A = _sAC(FR, j, mat)
                a(f"v_mfma_f32_16x16x32_bf16 {r4(A)}, {r4(_sKV(FR,t,mat*2))}, {r4(_sPQ(FR,t,j,0))}, 0")
        for j in range(2):
            for mat in range(2):
                A = _sAC(FR, j, mat)
                a(f"v_mfma_f32_16x16x32_bf16 {r4(A)}, {r4(_sKV(FR,t,mat*2+1))}, {r4(_sPQ(FR,t,j,1))}, {r4(A)}")
        a("s_nop 7")
        for j in range(2):
            A = _sAC(FR, j, 0); Dn = _sAC(FR, j, 1)
            P = _sO + j*4 + (t % 2)*2 + (8 if t >= 2 else 0) + (8 if t >= 4 else 0)
            if j == 1:
                pass
            for r in range(4):
                a(f"v_add_f32 v{Dn+r}, s53, v{Dn+r}")
            for r in range(4):
                a(f"v_rcp_f32 v{Dn+r}, v{Dn+r}")
            a("s_nop 0")
            for r in range(4):
                a(f"v_mul_f32 v{A+r}, v{A+r}, v{Dn+r}")
            a(f"v_cvt_pk_bf16_f32 v{P}, v{A}, v{A+1}")
            a(f"v_cvt_pk_bf16_f32 v{P+1}, v{A+2}, v{A+3}")
        if t in (1, 3):
            for j in range(2):
                Q = _sO + j*4 + (8 if t >= 2 else 0)
                swap_pair(a, Q)
                a(f"buffer_store_dwordx4 v[{Q}:{Q+3}], v{vSt}, s[16:19], s52 offen offset:{j*1024}")
            a(f"s_add_u32 s52, s52, {PLANE}")
        if t == 4:
            a("s_lshl_b32 s54, s42, 5")
            a(f"v_xor_b32 v{vSt1}, s54, v{vSt1}")
            a("s_cmp_eq_u32 s42, 0")
            a(f"s_cselect_b32 s54, {4*PLANE}, 0")
            a("s_add_u32 s54, s54, s51")
            for j in range(2):
                P = _sO + 16 + j*4
                a(f"buffer_store_dwordx2 v[{P}:{P+1}], v{vSt1}, s[16:19], s54 offen offset:{j*1024}")
```

```python
from asmlib import *
from layout import *

SLOT = 18432
NSLOT = 6
K3_LDS = SLOT * NSLOT + 2048
NST = 45

def gen_k3(a, name="k3_kernel", stamps=False):
    st = Stamps(a, stamps, 2)
    ACC = 0
    FR = 24
    XR = 64
    vA, vWa, vWb = 76, 77, 78
    bA, bWa, bWb = 79, 80, 81
    vT0, vT1, vT2, vT3 = 82, 83, 84, 85
    vLane, vC, vG, vSt = 86, 87, 88, 89
    vA1, vWa1, vWb1 = 90, 91, 92
    NV = 96
    def acc(i, bb): return ACC + (i*2+bb)*4
    def frA(s, i): return FR + s*20 + i*4
    def frW(s, bb): return FR + s*20 + 12 + bb*4
    def r4(x): return f"v[{x}:{x+3}]"
    kernel_header(a, name)
    a("s_cmp_ge_u32 s2, 240")
    a(f"s_cbranch_scc1 {name}_end")
    st.mark(0)
    a("s_and_b32 s24, s2, 7")
    a("s_lshr_b32 s25, s2, 3")
    a("s_mul_i32 s26, s24, 30")
    a("s_add_u32 s26, s26, s25")
    a("s_cmp_ge_u32 s26, 234")
    a(f"s_cbranch_scc1 {name}_end")
    a("s_load_dwordx2 s[4:5], s[0:1], 0")
    a("s_load_dwordx2 s[6:7], s[0:1], 16")
    a("s_load_dwordx4 s[8:11], s[0:1], 56")
    a("s_load_dwordx2 s[40:41], s[0:1], 80")
    a(f"v_lshrrev_b32 v{vT0}, 6, v0")
    a(f"v_and_b32 v{vLane}, 63, v0")
    a(f"v_readfirstlane_b32 s29, v{vT0}")
    a(f"s_mul_hi_u32 s27, s26, {(2**32 + 8)//9}")
    a("s_mul_i32 s28, s27, 9")
    a("s_sub_u32 s28, s26, s28")
    a("s_mul_i32 s27, s27, 80")
    a("s_mul_i32 s30, s24, 5")
    a(f"v_and_b32 v{vC}, 15, v{vLane}")
    a(f"v_lshrrev_b32 v{vG}, 4, v{vLane}")
    a("s_waitcnt lgkmcnt(0)")
    srd(a, 12, 4, S*D*2)
    srd(a, 16, 40, WS_END)
    srd(a, 20, 10, S*D*2)
    a("s_cmp_ge_u32 s29, 4")
    a(f"s_cbranch_scc1 {name}_loader")
    a("s_and_b32 s31, s29, 1")
    a("s_lshr_b32 s32, s29, 1")
    a("s_mul_i32 s33, s31, 48")
    a("s_add_u32 s33, s33, s27")
    a(f"v_add_u32 v{vT0}, s33, v{vC}")
    a(f"v_mul_u32_u24 v{vT0}, 1152, v{vT0}")
    a("s_lshl_b32 s34, s28, 7")
    a("s_lshl_b32 s35, s32, 6")
    a("s_add_u32 s34, s34, s35")
    a(f"v_lshl_add_u32 v{vSt}, v{vG}, 4, v{vT0}")
    a(f"v_add_u32 v{vSt}, s34, v{vSt}")
    a(f"v_lshl_add_u32 v{vT1}, v{vG}, 3, v{vT0}")
    a(f"v_add_u32 v{vT1}, s34, v{vT1}")
    for i in range(3):
        for bb in range(2):
            x = XR + (i*2+bb)*2
            a(f"buffer_load_dwordx2 v[{x}:{x+1}], v{vT1}, s[12:15], 0 offen offset:{bb*32}")
        if i < 2:
            a(f"v_add_u32 v{vT1}, {16*1152}, v{vT1}")
    a(f"v_lshrrev_b32 v{vT0}, 2, v{vC}")
    a(f"v_sub_u32 v{vT2}, 0, v{vT0}")
    a(f"v_and_b32 v{vT2}, 3, v{vT2}")
    a(f"v_xor_b32 v{vT2}, v{vT2}, v{vG}")
    a(f"v_lshlrev_b32 v{vT2}, 4, v{vT2}")
    a(f"v_lshl_add_u32 v{vT2}, v{vC}, 6, v{vT2}")
    a("s_mul_i32 s33, s31, 3072")
    a(f"v_add_u32 v{bA}, s33, v{vT2}")
    a(f"v_lshl_add_u32 v{vT2}, v{vG}, 3, v{vT0}")
    a(f"v_lshlrev_b32 v{vT2}, 7, v{vT2}")
    a(f"v_bfe_u32 v{vT0}, v{vC}, 1, 1")
    a("s_lshl_b32 s33, s32, 2")
    a(f"v_or_b32 v{vT0}, s33, v{vT0}")
    a(f"v_bfe_u32 v{vT3}, v{vC}, 3, 1")
    a(f"v_lshlrev_b32 v{vT3}, 1, v{vT3}")
    a(f"v_xor_b32 v{vT0}, v{vT0}, v{vT3}")
    a(f"v_and_b32 v{vT3}, 1, v{vG}")
    a(f"v_lshlrev_b32 v{vT3}, 2, v{vT3}")
    a(f"v_xor_b32 v{vT0}, v{vT0}, v{vT3}")
    a(f"v_lshl_add_u32 v{vT2}, v{vT0}, 4, v{vT2}")
    a(f"v_and_b32 v{vT3}, 1, v{vC}")
    a(f"v_lshl_add_u32 v{vT2}, v{vT3}, 3, v{vT2}")
    a(f"v_add_u32 v{bWa}, 10240, v{vT2}")
    a(f"v_xor_b32 v{bWb}, 32, v{bWa}")
    a("s_waitcnt vmcnt(0)")
    for i in range(3):
        for bb in range(2):
            x = XR + (i*2+bb)*2; A = acc(i, bb)
            for h in range(2):
                a(f"v_lshlrev_b32 v{A+2*h}, 16, v{x+h}")
                a(f"v_and_b32 v{A+2*h+1}, 0xffff0000, v{x+h}")
    a("s_mov_b32 s36, 0")
    st.mark(1)
    a("s_barrier")
    st.mark(2)
    def reads(s, ks, rA, rWa, rWb):
        L = []
        for bb, rW in enumerate((rWa, rWb)):
            for h in range(2):
                f = frW(s, bb) + 2*h
                L.append(f"ds_read_b64_tr_b16 v[{f}:{f+1}], v{rW} offset:{ks*4096+h*512}")
        for i in range(3):
            L.append(f"ds_read_b128 {r4(frA(s,i))}, v{rA} offset:{ks*5120+i*1024}")
        return L
    for r in reads(0, 0, bA, bWa, bWb):
        a(r)
    a(f"s_mov_b32 s37, {NST}")
    a.raw(".p2align 6")
    a.label(f"{name}_loop")
    def half(su, rl):
        idx = 0
        for i in range(3):
            for bb in range(2):
                if bb == 0:
                    a(f"s_waitcnt lgkmcnt({2-i+min(idx+ (1 if idx else 0),7)})")
                a(f"v_mfma_f32_16x16x32_bf16 {r4(acc(i,bb))}, {r4(frW(su,bb))}, {r4(frA(su,i))}, {r4(acc(i,bb))}")
                if idx == 0:
                    a(rl[0]); a(rl[1])
                elif idx + 1 < 7:
                    a(rl[idx+1])
                idx += 1
    a(f"v_add_u32 v{vA1}, s36, v{bA}")
    a(f"v_add_u32 v{vWa1}, s36, v{bWa}")
    a(f"v_add_u32 v{vWb1}, s36, v{bWb}")
    a(f"s_add_u32 s36, s36, {SLOT}")
    a(f"s_cmp_ge_u32 s36, {SLOT*NSLOT}")
    a("s_cselect_b32 s36, 0, s36")
    a(f"v_add_u32 v{vA}, s36, v{bA}")
    a(f"v_add_u32 v{vWa}, s36, v{bWa}")
    a(f"v_add_u32 v{vWb}, s36, v{bWb}")
    half(0, reads(1, 1, vA1, vWa1, vWb1))
    a("s_barrier")
    half(1, reads(0, 0, vA, vWa, vWb))
    a("s_sub_u32 s37, s37, 1")
    a("s_cmp_lg_u32 s37, 0")
    a(f"s_cbranch_scc1 {name}_loop")
    st.mark(3)
    a("s_waitcnt lgkmcnt(0)")
    a("s_nop 7")
    for i in range(3):
        if i == 2:
            a("s_cmp_eq_u32 s31, 1")
            a(f"s_cbranch_scc1 {name}_fin")
        Q = XR + i*4
        for bb in range(2):
            A = acc(i, bb)
            a(f"v_cvt_pk_bf16_f32 v{Q+2*bb}, v{A}, v{A+1}")
            a(f"v_cvt_pk_bf16_f32 v{Q+2*bb+1}, v{A+2}, v{A+3}")
        a("s_nop 1")
        a(f"v_permlane32_swap_b32 v{Q}, v{Q+2}")
        a(f"v_permlane32_swap_b32 v{Q+1}, v{Q+3}")
        a("s_nop 1")
        a(f"v_permlane16_swap_b32 v{Q}, v{Q+2}")
        a(f"v_permlane16_swap_b32 v{Q+1}, v{Q+3}")
        a("s_nop 1")
        a(f"buffer_store_dwordx4 v[{Q}:{Q+3}], v{vSt}, s[20:23], 0 offen")
        if i < 2:
            a(f"v_add_u32 v{vSt}, {16*1152}, v{vSt}")
    a.label(f"{name}_fin")
    st.mark(4)
    if stamps:
        a("s_waitcnt vmcnt(0)")
    st.mark(5)
    st.dump(6, 29, vT0, vT1)
    a("s_endpgm")
    a.label(f"{name}_loader")
    a("s_sub_u32 s31, s29, 4")
    a(f"v_lshrrev_b32 v{vT0}, 3, v{vLane}")
    a(f"v_mul_u32_u24 v{vT0}, 1152, v{vT0}")
    a(f"v_bfe_u32 v{vT1}, v{vLane}, 4, 1")
    a(f"v_lshlrev_b32 v{vT1}, 1, v{vT1}")
    a(f"v_and_b32 v{vT2}, 7, v{vLane}")
    a(f"v_xor_b32 v{vT1}, v{vT1}, v{vT2}")
    a(f"v_lshlrev_b32 v{vT1}, 4, v{vT1}")
    a(f"v_xor_b32 v{vT2}, 64, v{vT1}")
    a("s_lshl_b32 s32, s28, 7")
    a(f"s_mul_i32 s33, s31, {32*1152}")
    a("s_add_u32 s32, s32, s33")
    a(f"v_add_u32 v{vT0}, s32, v{vT0}")
    for p in range(4):
        a(f"v_add_u32 v{1+p}, v{vT0}, v{vT1 + (p&1)}")
        if p:
            a(f"v_add_u32 v{1+p}, {p*(8*1152-1024)}, v{1+p}")
    a(f"v_lshlrev_b32 v5, 4, v{vLane}")
    a("s_lshl_b32 s32, s27, 6")
    a(f"s_mul_i32 s33, s31, {PLANE}")
    a("s_add_u32 s32, s32, s33")
    a(f"s_add_u32 s32, s32, {WS_HO}")
    a("s_mul_i32 s38, s31, 5120")
    a("s_lshl_b32 s39, s31, 12")
    a("s_add_u32 s39, s39, 10240")
    a("s_and_b32 s9, s9, 0xffff")
    a("s_and_b32 s7, s7, 0xffff")
    a("s_mov_b32 s47, 0x00020000")
    a(f"s_mov_b32 s42, {FH*D*2}")
    a(f"s_mov_b32 s43, {D*D*2}")
    a("s_mov_b32 s36, 0")
    def issue():
        a(f"s_mul_i32 s33, s30, {2*PLANE}")
        a("s_add_u32 s33, s33, s32")
        a("s_add_u32 m0, s36, s38")
        a("s_cmp_lt_u32 s30, 36")
        a("s_cselect_b32 s44, s8, s6")
        a("s_cselect_b32 s45, s9, s7")
        a(f"s_cselect_b32 s46, s42, s43")
        a("s_cselect_b32 s34, 0, 36")
        for p in range(4):
            a(f"buffer_load_dwordx4 v5, s[16:19], s33 offen offset:{p*1024} lds")
        a("s_add_u32 m0, m0, 4096")
        a("s_add_u32 s33, s33, 4096")
        a("s_sub_u32 s34, s30, s34")
        a(f"buffer_load_dwordx4 v5, s[16:19], s33 offen lds")
        a("s_add_u32 m0, s36, s39")
        a(f"s_mul_i32 s34, s34, {64*1152}")
        for p in range(4):
            a(f"buffer_load_dwordx4 v{1+p}, s[44:47], s34 offen offset:{p*1024} lds")
        a("s_add_u32 s30, s30, 1")
        a(f"s_cmp_ge_u32 s30, {NST}")
        a("s_cselect_b32 s30, 0, s30")
        a(f"s_add_u32 s36, s36, {SLOT}")
        a(f"s_cmp_ge_u32 s36, {SLOT*NSLOT}")
        a("s_cselect_b32 s36, 0, s36")
    PRE = NSLOT - 1
    issue()
    issue()
    a(f"s_waitcnt vmcnt(9)")
    a("s_barrier")
    for _ in range(PRE - 2):
        issue()
    a(f"s_mov_b32 s37, {NST-PRE}")
    a.label(f"{name}_lloop")
    a(f"s_waitcnt vmcnt({9*(PRE-2)})")
    a("s_barrier")
    issue()
    a("s_sub_u32 s37, s37, 1")
    a("s_cmp_lg_u32 s37, 0")
    a(f"s_cbranch_scc1 {name}_lloop")
    for r in range(PRE):
        a(f"s_waitcnt vmcnt({9*max(PRE-2-r,0)})")
        a("s_barrier")
    a("s_endpgm")
    a.label(f"{name}_end")
    a("s_endpgm")
    return NV
```

```python
S, D, F, FH, H, DH = 2048, 576, 4608, 2304, 32, 18
KO = FH + D
PLANE = S * 64
WS_Z2T = 0
WS_Z1  = WS_Z2T + 16*32*144*128
WS_HO  = WS_Z1 + 256*4*9*1024
WS_PQ  = WS_HO + 90*PLANE + 8192
WS_ST  = WS_PQ + 20*PLANE
WS_KVP = WS_ST + 256*128*8
WS_KVF = WS_KVP + 4*16*36864
WS_END = WS_KVF + 4*36*1024
PB = [0, 0, 0, 1, 1, 2, 2, 3, 3]
def w0_of(b):
    return 32 * PB[b]
```

```python
import sys
from asmlib import *
from layout import *
import k2
HEAD = open("parallel_sum__linear_attn_block__mixer_gmlp__prompt.s.ref").read().split("; Override")[0]
def build(kernels, out, stamps=False, **kw):
    a = Asm()
    a.raw(HEAD.rstrip())
    descs = []
    k2thr = 448 if kw.get('k2', {}).get('pfw', True) else 384
    body = Asm()
    for kn in kernels:
        if kn == "k2":
            nv = k2.gen_k2(body, "k2_kernel", stamps=stamps, **kw.get("k2", {}))
            a.raw(f"; @launch kernel=k2_kernel grid=(256,1,1) block=({k2thr},1,1) lds={k2.K2_LDS}")
            descs.append(kernel_desc("k2_kernel", nv, 102 if stamps else 64, (nv+3)//4*4))
        elif kn == "k3":
            import k3
            nv = k3.gen_k3(body, "k3_kernel", stamps=stamps, **kw.get("k3", {}))
            a.raw(f"; @launch kernel=k3_kernel grid=(240,1,1) block=(384,1,1) lds={k3.K3_LDS}")
            descs.append(kernel_desc("k3_kernel", nv, 102 if stamps else 64, (nv+3)//4*4))
        elif kn == "k1":
            import k1
            nv = k1.gen_k1(body, "k1_kernel", stamps=stamps, **kw.get("k1", {}))
            a.raw(f"; @launch kernel=k1_kernel grid=(256,1,1) block=(512,1,1) lds={k1.K1_LDS}")
            descs.append(kernel_desc("k1_kernel", nv, 102, (nv+3)//4*4))
    a.raw('.amdgcn_target "amdgcn-amd-amdhsa--gfx950"')
    a.raw(".text")
    a.lines += body.lines
    a.raw('.section .rodata,"a"')
    for d in descs:
        a.raw(".p2align 6")
        a.raw(d)
    open(out, "w").write(a.text())
if __name__ == "__main__":
    build(sys.argv[2].split(","), sys.argv[1], stamps=(len(sys.argv) > 3))
```

```python
import struct
from asmlib import *
from layout import *
from k2 import swap_pair, r4

WSLOT = 20480
NRING = 4
PARK0 = WSLOT * NRING
PARK1 = PARK0 + 36864
LFLAG = PARK1 + 36864
LSTAT = LFLAG + 64
K1_LDS = LSTAT + 2048
DLOOK = 6
OOB = 0x7f000000

XA = 0
ACC = 144
RING = 216
JUNK = RING + 24
VD = 244
vRd = 249
vRdB = 250
vL16 = 251
vT = 252
NV = 256
XJ = 252
def xa(j, ks): return XA + (ks*2+j)*4
def acc(j, b): return ACC + (b*2+j)*4
def f2h(x): return hex(struct.unpack("<I", struct.pack("<f", x))[0])
def pr(x): return f"v[{x}:{x+1}]"

sM, sCG, sRole, sW8, sW4, sG = 20, 21, 22, 23, 24, 25
sStep = 26
sCol = [27, 28, 29]
sDoff, sDslot, sRslot = 30, 31, 32
sT0, sT1, sT2, sT3, sT4 = 33, 34, 35, 36, 37
sColNext = 38
sPf = 39
sN = 40
sPark = 41
sWm0 = 43
sGC = 46
sL2E = 48
sRet = 50
sNt = [52, 53, 54]
sSpin = 55
sOnes = 42
sZ1 = 44
sTagOff = 3
sTag = 84
sPubW = 45
sWp = 82
PFS = 56

def gen_k1(a, name="k1_kernel", stamps=False, wt=" sc1", prefetch=True, wpf=True, exp="", pm=2, ps=0, fine=False, pslp=16, fs=6, ep=False):
    st = Stamps(a, stamps, 0)
    N = name
    def lane_cg(vc, vg, a=a):
        a(f"v_bfe_u32 v{vc}, v{vL16}, 4, 4")
        a(f"v_lshrrev_b32 v{vg}, 8, v{vL16}")
    def dma_groups():
        return [
            [f"s_add_u32 m0, s{sDslot}, s{sWm0}", f"s_add_u32 s{sDslot}, s{sDslot}, {WSLOT}",
             f"buffer_load_dwordx4 v{VD}, s[8:11], s{sDoff} offen lds"],
            [f"buffer_load_dwordx4 v{VD+1}, s[8:11], s{sDoff} offen offset:1024 lds"],
            [f"buffer_load_dwordx4 v{VD+2}, s[8:11], s{sDoff} offen offset:2048 lds"],
            [f"buffer_load_dwordx4 v{VD+3}, s[8:11], s{sDoff} offen offset:3072 lds"],
            ["s_add_u32 m0, m0, 4096", f"s_cmp_ge_u32 s{sDslot}, {WSLOT*NRING}", f"s_cselect_b32 s{sDslot}, 0, s{sDslot}",
             f"buffer_load_dwordx4 v{VD+4}, s[8:11], s{sDoff} offen lds", f"s_add_u32 s{sDoff}, s{sDoff}, s{sStep}"],
        ]
    def dma_issue():
        for g in dma_groups():
            for l in g:
                a(l)
    def pf_group(junk=JUNK):
        return [f"buffer_load_dwordx4 {r4(junk)}, v{vL16}, s[{PFS}:{PFS+3}], s{sPf} offen", f"s_add_u32 s{sPf}, s{sPf}, 4096"]
    class Side:
        def __init__(self, solo, q0=()):
            self.solo = solo
            self.q = list(q0)
        def slot(self, sl, body=None, extra=None, lgkm=False, drain=False):
            lines = [l.strip() for l in body.lines] if body is not None else []
            groups = []
            if not self.solo:
                if sl > 0:
                    groups = dma_groups()
                    if sl == 7:
                        groups[0] = [f"s_mov_b32 s{sDoff}, s{sColNext}"] + groups[0]
                if extra:
                    groups.append(extra)
            pts = [i for i in range(1, len(lines)) if lines[i].startswith("v_") and lines[i-1].startswith("v_")
                   and "readfirstlane" not in lines[i] and "cndmask" not in lines[i]]
            ins = {}
            if groups:
                ins[0] = list(groups[0])
                rest = groups[1:]
                if len(pts) >= len(rest) and rest:
                    for k, g in enumerate(rest):
                        ins.setdefault(pts[(k+1)*len(pts)//(len(rest)+1)], []).extend(g)
                else:
                    for g in rest:
                        ins[0].extend(g)
            for i, l in enumerate(lines + [None]):
                seq = list(ins.get(i, [])) + ([l] if l is not None else [])
                for x in seq:
                    if x.endswith(":"):
                        a.label(x[:-1])
                    else:
                        a(x)
                    if x.startswith("buffer_") and "store_byte" not in x and ";nc" not in x:
                        self.q.append(f"D{sl+2}" if x.endswith(" lds") else "x")
            if not self.solo:
                need = f"D{sl+1}"
                n = None
                if drain:
                    n = 0
                elif need in self.q:
                    n = len(self.q) - 1 - max(i for i, x in enumerate(self.q) if x == need)
                w = []
                if n is not None:
                    w.append(f"vmcnt({min(n, 63)})")
                if lgkm:
                    w.append("lgkmcnt(0)")
                if w:
                    a("s_waitcnt " + " ".join(w))
                a("s_barrier")
        def finish(self, pad=True):
            if not self.solo:
                dma_issue()
                if pad:
                    a(f"s_mov_b32 s{sT0}, {OOB}")
                    a(f"buffer_load_dword v{vT}, v{vL16}, s[12:15], s{sT0} offen")
    def set_flag(a):
        L = f"{N}_nf{set_flag.n}"; set_flag.n += 1
        a(f"s_cmp_lg_u32 s{sW4}, 0")
        a(f"s_cbranch_scc1 {L}")
        a(f"s_lshl_b32 s{sT0}, s{sM}, 4")
        a(f"s_lshl_b32 s{sT1}, s{sCG}, 2")
        a(f"s_add_u32 s{sT0}, s{sT0}, s{sT1}")
        a(f"s_add_u32 s{sT0}, s{sT0}, s{sRole}")
        a(f"v_mov_b32 v{JUNK}, 1")
        a("s_nop 0")
        a(f"v_mov_b32 v{JUNK+1}, 0")
        a(f"buffer_store_byte v{JUNK}, v{JUNK+1}, s[16:19], s{sT0} offen sc1")
        a.label(L)
    set_flag.n = 0
    def call(lbl):
        a(f"s_call_b64 s[{sRet}:{sRet+1}], {N}_{lbl}")
    def ret():
        a(f"s_setpc_b64 s[{sRet}:{sRet+1}]")
    def poll_stats(tag, slp):
        TMP = RING
        a(f"v_mov_b32 v{vT+3}, {LFLAG}")
        a(f"s_mov_b32 s{sSpin}, 0")
        a(f"ds_read_b32 v{TMP}, v{vT+3}")
        a("s_waitcnt lgkmcnt(0)")
        a(f"v_readfirstlane_b32 s{sT1}, v{TMP}")
        a(f"s_cmp_lg_u32 s{sT1}, 1")
        a(f"s_cbranch_scc1 {N}_{tag}slow")
        a.label(f"{N}_{tag}go")
        b = Asm()
        pend.append(b)
        a_main, a2 = a, b
        a2.label(f"{N}_{tag}slow")
        slow(a2, tag, slp)
    pend = []
    def slow(a, tag, slp):
        TMP = RING
        a(f"s_cmp_lg_u32 s{sW8}, 4")
        a(f"s_cbranch_scc1 {N}_{tag}wait")
        a(f"s_lshl_b32 s{sT0}, s{sM}, 4")
        a(f"v_mov_b32 v{vT+2}, 0")
        a.label(f"{N}_{tag}poll")
        a(f"buffer_load_dwordx4 {r4(TMP)}, v{vT+2}, s[16:19], s{sT0} offen sc1")
        a(f"s_add_u32 s{sSpin}, s{sSpin}, 1")
        a("s_waitcnt vmcnt(0)")
        a(f"v_and_b32 v{TMP}, v{TMP}, v{TMP+1}")
        a(f"v_and_b32 v{TMP+2}, v{TMP+2}, v{TMP+3}")
        a(f"v_and_b32 v{TMP}, v{TMP}, v{TMP+2}")
        a("s_nop 0")
        a(f"v_readfirstlane_b32 s{sT1}, v{TMP}")
        a(f"s_and_b32 s{sT1}, s{sT1}, 0x01010100")
        a(f"s_cmp_eq_u32 s{sT1}, 0x01010100")
        a(f"s_cbranch_scc1 {N}_{tag}seen")
        a(f"s_sleep {slp}")
        a(f"s_cmp_lt_u32 s{sSpin}, 0x20000")
        a(f"s_cbranch_scc1 {N}_{tag}poll")
        a.label(f"{N}_{tag}seen")
        a(f"v_mov_b32 v{TMP}, 1")
        a(f"ds_write_b32 v{vT+3}, v{TMP}")
        a(f"s_branch {N}_{tag}go")
        a.label(f"{N}_{tag}wait")
        a(f"ds_read_b32 v{TMP}, v{vT+3}")
        a(f"s_add_u32 s{sSpin}, s{sSpin}, 1")
        a("s_waitcnt lgkmcnt(0)")
        a(f"v_readfirstlane_b32 s{sT1}, v{TMP}")
        a(f"s_cmp_eq_u32 s{sT1}, 1")
        a(f"s_cbranch_scc1 {N}_{tag}go")
        a("s_sleep 4")
        a(f"s_cmp_lt_u32 s{sSpin}, 0x400000")
        a(f"s_cbranch_scc1 {N}_{tag}wait")
        a(f"s_branch {N}_{tag}go")
    def get_tag(a=a):
        a(f"v_mov_b32 v{vT+3}, {LFLAG}")
        a(f"ds_read_b32 v{vT+3}, v{vT+3}")
        a("s_waitcnt lgkmcnt(0)")
        a(f"v_readfirstlane_b32 s{sTag}, v{vT+3}")
        a(f"s_mul_i32 s{sTag+1}, s{sTag}, 0x9e3779b1")
        a(f"s_xor_b32 s{sTag+1}, s{sTag+1}, 0x5bd1e995")
    def xreduce(a, R, n):
        for sw in ("v_permlane32_swap_b32", "v_permlane16_swap_b32"):
            for i in range(n):
                a(f"v_mov_b32 v{R+n+i}, v{R+i}")
            a("s_nop 1")
            for i in range(n):
                a(f"{sw} v{R+i}, v{R+n+i}")
            a("s_nop 1")
            for i in range(n):
                a(f"v_add_f32 v{R+i}, v{R+i}, v{R+n+i}")

    kernel_header(a, name)
    a("s_cmp_ge_u32 s2, 256")
    a(f"s_cbranch_scc1 {N}_end")
    st.mark(0)
    st.markrt(8)
    KP = 84
    a(f"s_load_dwordx4 s[{KP}:{KP+3}], s[0:1], 0")
    a(f"s_load_dwordx4 s[{KP+4}:{KP+7}], s[0:1], 32")
    a(f"s_load_dwordx4 s[{KP+8}:{KP+11}], s[0:1], 72")
    a(f"s_load_dwordx2 s[60:61], s[0:1], 56")
    a(f"s_load_dwordx2 s[62:63], s[0:1], 16")
    a(f"v_lshrrev_b32 v{vT}, 6, v0")
    a(f"v_and_b32 v{vT+3}, 63, v0")
    a(f"v_readfirstlane_b32 s{sW8}, v{vT}")
    a(f"v_lshlrev_b32 v{vL16}, 4, v{vT+3}")
    a(f"s_and_b32 s{sT0}, s2, 7")
    a(f"s_lshr_b32 s{sT1}, s2, 3")
    a(f"s_and_b32 s{sM}, s{sT0}, 1")
    a(f"s_lshl_b32 s{sM}, s{sM}, 3")
    a(f"s_and_b32 s{sT2}, s{sT1}, 7")
    a(f"s_add_u32 s{sM}, s{sM}, s{sT2}")
    a(f"s_lshr_b32 s{sCG}, s{sT0}, 1")
    a(f"s_lshr_b32 s{sRole}, s{sT1}, 3")
    a(f"s_and_b32 s{sW4}, s{sW8}, 3")
    a(f"s_lshr_b32 s{sG}, s{sW8}, 2")
    a(f"s_mul_i32 s{sWm0}, s{sW4}, 5120")
    a(f"s_mov_b32 s{sGC}, {f2h(-GKAPPA)}")
    a(f"s_cmp_eq_u32 s{sRole}, 0")
    a(f"s_cselect_b32 s{sGC+1}, 1.0, {f2h(GK)}")
    a(f"s_mov_b32 s{sL2E}, 0x3fb8aa3b")
    a(f"s_mov_b32 s{sL2E+1}, 0x358637bd")
    a(f"s_mov_b32 s{sOnes}, 0x3f803f80")
    a(f"s_mov_b32 s{sPubW}, 0")
    a(f"v_lshrrev_b32 v{vT}, 3, v{vT+3}")
    a(f"v_and_b32 v{vT+1}, 7, v{vT+3}")
    a(f"v_xor_b32 v{vT+1}, v{vT+1}, v{vT}")
    a(f"v_lshlrev_b32 v{vT+1}, 4, v{vT+1}")
    a(f"s_lshl_b32 s{sT2}, s{sM}, 7")
    a(f"v_add_u32 v{vT}, s{sT2}, v{vT}")
    a(f"v_mul_u32_u24 v{vT}, 1152, v{vT}")
    a(f"v_add_u32 v{vT}, v{vT}, v{vT+1}")
    a(f"s_lshl_b32 s{sT2}, s{sCG}, 2")
    a(f"s_add_u32 s{sT2}, s{sT2}, s{sRole}")
    a(f"s_mul_i32 s{sT2}, s{sT2}, 9")
    a(f"s_add_u32 s{sT2}, s{sT2}, s{sW8}")
    a("s_waitcnt lgkmcnt(0)")
    srd(a, 4, KP, S*D*2)
    for q in range(18):
        a(f"s_cmp_ge_u32 s{sT2}, 144")
        a(f"s_cselect_b32 s{sT3}, 144, 0")
        a(f"s_sub_u32 s{sT2}, s{sT2}, s{sT3}")
        a(f"s_mul_hi_u32 s{sT3}, s{sT2}, {(2**32+8)//9}")
        a(f"s_lshl_b32 m0, s{sT2}, 10")
        a(f"s_mul_i32 s{sT4}, s{sT3}, {9216-9*128}")
        a(f"s_lshl_b32 s{sT3}, s{sT2}, 7")
        a(f"s_add_u32 s{sT3}, s{sT3}, s{sT4}")
        a(f"buffer_load_dwordx4 v{vT}, s[4:7], s{sT3} offen lds")
        a(f"s_add_u32 s{sT2}, s{sT2}, 8")
    srd(a, 12, KP+10, WS_END)
    srd(a, 16, KP+8, 256)
    srd(a, PFS, KP+6, S*S*2)
    a(f"s_add_u32 s{sT0}, s{sCG}, 16")
    a(f"s_cmp_eq_u32 s{sRole}, 0")
    a(f"s_cselect_b32 s{sTagOff}, s{sT0}, s{sM}")
    a(f"s_cselect_b32 s{sT0}, s{sM}, s{sCG}")
    a(f"s_lshl_b32 s{sTagOff}, s{sTagOff}, 2")
    a(f"s_lshr_b32 s{sT1}, s{sRole}, 1")
    a(f"s_or_b32 s{sT0}, s{sT0}, s{sT1}")
    a(f"s_or_b32 s{sT0}, s{sT0}, s{sW8}")
    a(f"s_cmp_eq_u32 s{sT0}, 0")
    a(f"s_cbranch_scc1 {N}_nonce")
    a.label(f"{N}_nonceback")
    a(f"s_mov_b32 s{sT3}, {D*F*2+4096}")
    a(f"s_movk_i32 s{sT2}, 9216")
    a(f"s_cmp_eq_u32 s{sRole}, 0")
    a(f"s_cselect_b32 s8, s{KP+2}, s{KP+4}")
    a(f"s_cselect_b32 s9, s{KP+3}, s{KP+5}")
    a(f"s_cselect_b32 s10, {D*3*D*2+4096}, s{sT3}")
    a(f"s_cselect_b32 s{sT4}, 3456, s{sT2}")
    a(f"s_and_b32 s9, s9, 0xffff")
    a("s_sub_u32 s8, s8, 4096")
    a("s_subb_u32 s9, s9, 0")
    a("s_mov_b32 s11, 0x00020000")
    a(f"s_lshl_b32 s{sStep}, s{sT4}, 6")
    a(f"s_mul_i32 s{sT0}, s{sCG}, 288")
    a(f"s_lshl_b32 s{sT1}, s{sCG}, 2")
    a(f"s_cmp_eq_u32 s{sRole}, 0")
    a(f"s_cbranch_scc0 {N}_rz")
    a(f"s_add_u32 s{sCol[0]}, s{sT0}, 1152")
    a(f"s_add_u32 s{sCol[1]}, s{sT0}, 2304")
    a(f"s_mov_b32 s{sCol[2]}, s{sT0}")
    for i in range(3):
        a(f"s_mov_b32 s{sNt[i]}, s{sCG}")
    a(f"s_branch {N}_rdone")
    a.label(f"{N}_rz")
    a(f"s_cmp_eq_u32 s{sRole}, 1")
    a(f"s_cbranch_scc0 {N}_rc")
    a(f"s_mov_b32 s{sNt[0]}, s{sT1}")
    a(f"s_add_u32 s{sNt[1]}, s{sT1}, 1")
    a(f"s_mov_b32 s{sNt[2]}, 0")
    a(f"s_mul_i32 s{sCol[0]}, s{sNt[0]}, 288")
    a(f"s_add_u32 s{sCol[0]}, s{sCol[0]}, 4608")
    a(f"s_add_u32 s{sCol[1]}, s{sCol[0]}, 288")
    a(f"s_mov_b32 s{sCol[2]}, {OOB}")
    a(f"s_branch {N}_rdone")
    a.label(f"{N}_rc")
    a(f"s_add_u32 s{sNt[0]}, s{sT1}, s{sRole}")
    a(f"s_sub_u32 s{sT2}, s{sRole}, 2")
    a(f"s_lshl_b32 s{sT2}, s{sT2}, 1")
    a(f"s_add_u32 s{sNt[1]}, s{sT1}, s{sT2}")
    a(f"s_add_u32 s{sNt[2]}, s{sNt[1]}, 1")
    a(f"s_mul_i32 s{sCol[0]}, s{sNt[0]}, 288")
    a(f"s_add_u32 s{sCol[0]}, s{sCol[0]}, 4608")
    a(f"s_mul_i32 s{sCol[1]}, s{sNt[1]}, 288")
    a(f"s_add_u32 s{sCol[2]}, s{sCol[1]}, 288")
    a.label(f"{N}_rdone")
    t0, t1, t2, t3 = RING, RING+1, RING+2, RING+3
    a(f"s_mul_i32 s{sT0}, s{sW4}, 320")
    a(f"v_mov_b32 v{t3}, {OOB}")
    for p in range(5):
        a(f"v_add_u32 v{t0}, s{sT0}, v{vT+3}")
        if p:
            a(f"v_add_u32 v{t0}, {64*p}, v{t0}")
        a(f"v_mul_u32_u24 v{t1}, 3277, v{t0}")
        a(f"v_lshrrev_b32 v{t1}, 16, v{t1}")
        a(f"v_mul_u32_u24 v{t2}, 20, v{t1}")
        a(f"v_sub_u32 v{t0}, v{t0}, v{t2}")
        a(f"v_bfe_u32 v{t2}, v{t1}, 3, 1")
        a(f"v_lshlrev_b32 v{t2}, 1, v{t2}")
        a(f"v_sub_u32 v{t0}, v{t0}, v{t2}")
        a(f"v_cmp_gt_u32 vcc, 18, v{t0}")
        a(f"v_mul_lo_u32 v{t1}, v{t1}, s{sT4}")
        a(f"v_lshl_add_u32 v{t1}, v{t0}, 4, v{t1}")
        a(f"v_add_u32 v{t1}, {4096 - (p % 4)*1024}, v{t1}")
        a(f"v_cndmask_b32 v{VD+p}, v{t3}, v{t1}, vcc")
    a(f"s_mul_i32 s{sDoff}, s{sG}, s{sStep}")
    a(f"s_add_u32 s{sDoff}, s{sDoff}, s{sCol[0]}")
    a(f"s_and_b32 s{sT0}, s{sM}, 7")
    a(f"s_mul_i32 s{sT1}, s{sT0}, s{sStep}")
    a(f"s_add_u32 s{sT2}, s{sCol[0]}, s{sT1}")
    a(f"s_add_u32 s{sWp+1}, s{sCol[1]}, s{sT1}")
    a(f"s_add_u32 s{sPf}, s{sCol[2]}, s{sT1}")
    a(f"s_mov_b32 s{sT3}, {OOB}")
    for t in range(3):
        a(f"s_cmp_eq_u32 s{sT0}, {t}")
        a(f"s_cselect_b32 s{sT3}, s{sCol[t]}, s{sT3}")
    a(f"s_lshl_b32 s{sT1}, s{sStep}, 3")
    a(f"s_add_u32 s{sT3}, s{sT3}, s{sT1}")
    a(f"s_cmp_eq_u32 s{sG}, 0")
    a(f"s_cselect_b32 s{sWp}, s{sT2}, s{sT3}")
    lane_cg(t0, t1)
    a(f"v_lshrrev_b32 v{t2}, 2, v{t0}")
    a(f"v_lshl_add_u32 v{t2}, v{t1}, 3, v{t2}")
    a(f"v_mul_u32_u24 v{t2}, 320, v{t2}")
    a(f"v_and_b32 v{t3}, 1, v{t1}")
    a(f"v_lshl_add_u32 v{t2}, v{t3}, 5, v{t2}")
    a(f"v_and_b32 v{t3}, 3, v{t0}")
    a(f"v_lshl_add_u32 v{vRdB}, v{t3}, 3, v{t2}")
    a(f"v_lshrrev_b32 v{t2}, 3, v{t0}")
    a(f"v_mul_u32_u24 v{t2}, 9216, v{t2}")
    a(f"v_and_b32 v{t3}, 7, v{t0}")
    a(f"v_lshl_add_u32 v{t2}, v{t3}, 7, v{t2}")
    a(f"v_xor_b32 v{t3}, v{t3}, v{t1}")
    a(f"v_lshl_add_u32 v{t2}, v{t3}, 4, v{t2}")
    a(f"s_mul_i32 s{sT0}, s{sW4}, 36864")
    a(f"v_add_u32 v{t2}, s{sT0}, v{t2}")
    a(f"v_xor_b32 v{t3}, 64, v{t2}")
    a(f"v_mov_b32 v{vT+1}, {LFLAG}")
    a(f"v_mov_b32 v{vT+2}, 0")
    a(f"v_mov_b32 v{vT+3}, 0")
    a(f"ds_write_b64 v{vT+1}, {pr(vT+2)}")
    a(f"s_waitcnt vmcnt(0) lgkmcnt(0)")
    a("s_barrier")
    st.mark(1)
    a(f"s_cmp_eq_u32 s{sG}, 1")
    a(f"s_cbranch_scc1 {N}_g1")
    SS = ACC + 24
    LNP = ACC + 32
    NT = RING + 8
    def ln_phase(j):
        for ks in range(18):
            a(f"ds_read_b128 {r4(xa(j,ks))}, v{t2 + (ks&1)} offset:{j*18432 + (ks>>1)*1024}")
            if ks == 11:
                a("s_waitcnt lgkmcnt(6)")
        extra = [f"buffer_load_dwordx4 {r4(ACC+4*p)}, v{VD+p}, s[8:11], s{sDoff} offen offset:{(p%4)*1024}" for p in range(5)]
        late = [f"buffer_load_dwordx4 {r4(ACC+40)}, v{VD+p}, s[8:11], s{sWp} offen offset:{(p%4)*1024}" for p in range(5)] if wpf else []
        if j == 0:
            a(f"v_mov_b32 v{vT+1}, 0")
            late.append(f"buffer_load_dword v{vT}, v{vT+1}, s[16:19], s{sTagOff} offen sc1")
        nwp = len(late)
        for i in range(4):
            a(f"v_mov_b32 v{SS+i}, 0")
        for ks in range(18):
            if extra and ks % 3 == 0:
                a(extra.pop(0))
            if ks in (0, 6, 12):
                a(f"s_waitcnt lgkmcnt({12 if ks == 0 else 6 if ks == 6 else 0})")
            for r in range(4):
                x = xa(j, ks) + r
                o = 2 if (r & 1) else 0
                a(f"v_dot2c_f32_bf16 v{SS+o}, s{sOnes}, v{x}")
                a(f"v_dot2c_f32_bf16 v{SS+o+1}, v{x}, v{x}")
        a("s_nop 3")
        for i in range(2):
            a(f"v_add_f32 v{SS+i}, v{SS+i}, v{SS+2+i}")
        xreduce(a, SS, 2)
        inv = f2h(1.0/576)
        a(f"v_mul_f32 v{SS}, {inv}, v{SS}")
        a(f"v_mul_f32 v{SS+1}, {inv}, v{SS+1}")
        a(f"v_fma_f32 v{SS+1}, -v{SS}, v{SS}, v{SS+1}")
        a(f"v_max_f32 v{SS+1}, 0, v{SS+1}")
        a(f"v_add_f32 v{SS+1}, 0x3727c5ac, v{SS+1}")
        a(f"v_rsq_f32 v{LNP}, v{SS+1}")
        a("s_nop 0")
        a(f"v_mul_f32 v{LNP}, s{sGC+1}, v{LNP}")
        a(f"v_mul_f32 v{LNP+1}, v{SS}, v{LNP}")
        a(f"v_sub_f32 v{LNP+1}, 0, v{LNP+1}")
        for ks in range(18):
            x = xa(j, ks)
            for r in range(4):
                a(f"v_lshlrev_b32 v{NT+2*r}, 16, v{x+r}")
                a(f"v_and_b32 v{NT+2*r+1}, 0xffff0000, v{x+r}")
            for r in range(4):
                a(f"v_pk_fma_f32 {pr(NT+2*r)}, {pr(NT+2*r)}, {pr(LNP)}, {pr(LNP)} op_sel:[0,0,1] op_sel_hi:[1,0,1]")
            for r in range(4):
                a(f"v_cvt_pk_bf16_f32 v{x+r}, v{NT+2*r}, v{NT+2*r+1}")
            a(f"ds_write_b128 v{t2 + (ks&1)}, {r4(x)} offset:{j*18432 + (ks>>1)*1024}")
            if late and ks % 3 == 1:
                a(late.pop(0))
        a("s_waitcnt lgkmcnt(0)")
        a("s_barrier")
        for ks in range(18):
            a(f"ds_read_b128 {r4(xa(1-j,ks))}, v{t2 + (ks&1)} offset:{(1-j)*18432 + (ks>>1)*1024}")
            if ks == 11:
                a("s_waitcnt lgkmcnt(4)")
        a(f"s_add_u32 s{sT0}, s{sWm0}, {j*WSLOT}")
        a(f"v_add_u32 v{vRd}, s{sT0}, v{vL16}")
        a(f"s_waitcnt vmcnt({nwp}) lgkmcnt(0)")
        a("s_barrier")
        for p in range(5):
            a(f"ds_write_b128 v{vRd}, {r4(ACC+4*p)} offset:{p*1024}")
    ln_phase(0)
    a(f"s_setprio {pm}")
    st.mark(2)
    a("s_waitcnt lgkmcnt(0)")
    a("s_barrier")
    a(f"s_mov_b32 s{sRslot}, 0")
    a(f"s_cmp_eq_u32 s{sRole}, 0")
    a(f"s_cbranch_scc1 {N}_g0a")
    call("main1")
    a(f"s_branch {N}_g0b")
    a.label(f"{N}_g0a")
    call("main0")
    a.label(f"{N}_g0b")
    st.mark(3)
    a(f"s_cmp_eq_u32 s{sW4}, 1")
    a(f"s_cbranch_scc1 {N}_nonce2")
    a.label(f"{N}_nonce2back")
    a(f"s_setprio {ps}")
    a(f"s_mov_b32 s{sDslot}, 0")
    a(f"s_mul_i32 s{sDoff}, s{sStep}, 3")
    a(f"s_add_u32 s{sDoff}, s{sDoff}, s{sCol[1]}")
    a(f"s_mov_b32 s{sColNext}, s{sCol[2]}")
    a(f"s_mov_b32 s{sN}, s{sNt[0]}")
    a(f"s_mov_b32 s{sPark}, {PARK0}")
    a(f"s_cmp_eq_u32 s{sRole}, 0")
    a(f"s_cbranch_scc1 {N}_g0q")
    call("epi_z2_side")
    st.mark(4)
    a(f"s_cmp_eq_u32 s{sRole}, 1")
    a(f"s_cbranch_scc0 {N}_g0t2")
    call("final")
    a(f"s_branch {N}_done")
    a.label(f"{N}_g0q")
    call("epi_k_side")
    get_tag()
    st.mark(4)
    a.label(f"{N}_g0t2")
    a(f"s_setprio {pm}")
    a(f"s_mov_b32 s{sRslot}, {2*WSLOT}")
    a(f"s_or_b32 s{sT0}, s{sW4}, s{sRole}")
    a(f"s_cmp_eq_u32 s{sT0}, 0")
    a(f"s_cselect_b32 s{sPubW}, 1, 0")
    call("main1")
    st.mark(5)
    a(f"s_mov_b32 s{sN}, s{sNt[2]}")
    a(f"s_cmp_eq_u32 s{sRole}, 0")
    a(f"s_cbranch_scc1 {N}_g0q2")
    call("epi_z1_solo")
    a(f"s_branch {N}_done")
    a.label(f"{N}_g0q2")
    call("epi_q")
    a(f"s_branch {N}_done")
    a.label(f"{N}_g1")
    ln_phase(1)
    a(f"s_mov_b32 s{sDslot}, {2*WSLOT}")
    a(f"s_add_u32 s{sDoff}, s{sDoff}, s{sStep}")
    a(f"s_mov_b32 s{sColNext}, s{sCol[1]}")
    dma_issue()
    st.mark(2)
    a("s_waitcnt lgkmcnt(0)")
    a("s_barrier")
    sd = Side(False, ["D2"]*5)
    wl = []
    if wpf:
        for sreg in (sWp+1, sPf):
            wl += [f"buffer_load_dwordx4 {r4(vT)}, v{VD+p}, s[8:11], s{sreg} offen offset:{(p%4)*1024}" for p in range(5)]
    for s in range(9):
        ex = wl[2*(s-1):2*s] if 1 <= s <= 5 else None
        sd.slot(s, extra=ex)
    sd.finish()
    st.mark(3)
    a(f"s_setprio {pm}")
    a(f"s_mov_b32 s{sRslot}, {WSLOT}")
    a(f"s_cmp_eq_u32 s{sRole}, 0")
    a(f"s_cbranch_scc1 {N}_g1a")
    call("main1")
    a(f"s_branch {N}_g1b")
    a.label(f"{N}_g1a")
    call("main0")
    a.label(f"{N}_g1b")
    st.mark(4)
    a(f"s_setprio {ps}")
    a(f"s_mov_b32 s{sDslot}, {WSLOT}")
    a(f"s_mul_i32 s{sDoff}, s{sStep}, 3")
    a(f"s_add_u32 s{sDoff}, s{sDoff}, s{sCol[2]}")
    a(f"s_mov_b32 s{sColNext}, {OOB}")
    a(f"s_mov_b32 s{sN}, s{sNt[1]}")
    a(f"s_mov_b32 s{sPark}, {PARK1}")
    a(f"s_cmp_eq_u32 s{sRole}, 0")
    a(f"s_cbranch_scc1 {N}_epi_v")
    a(f"s_cmp_eq_u32 s{sRole}, 1")
    a(f"s_cbranch_scc0 {N}_g1z1")
    call("epi_z2_solo")
    st.mark(5)
    call("final")
    a(f"s_branch {N}_done")
    a.label(f"{N}_g1z1")
    call("epi_z1_side")
    st.mark(5)
    a(f"s_mov_b32 s{sN}, s{sNt[0]}")
    a(f"s_mov_b32 s{sPark}, {PARK0}")
    call("final")
    for b in range(9):
        if b % 4 == 0 and b:
            a(f"s_add_u32 s{sZ1}, s{sZ1}, 4096")
        a(f"buffer_store_dwordx4 {r4(acc(0,b))}, v{vL16}, s[12:15], s{sZ1} offen offset:{(b%4)*1024}{wt}")
    a.label(f"{N}_done")
    st.mark(6)
    if stamps:
        a("s_waitcnt vmcnt(0)")
    st.mark(7)
    st.markrt(9)
    st.dump(10, sW8, vT, vT+1)
    a.label(f"{N}_end")
    a("s_endpgm")

    for orient in range(2):
        a.raw(".p2align 6")
        a.label(f"{N}_main{orient}")
        a(f"v_add_u32 v{vRd}, s{sRslot}, v{vRdB}")
        def rd(gi, hs=(0, 1)):
            s, n = divmod(gi, 18)
            kl, b = divmod(n, 9)
            f = RING + (gi % 7) * 4
            for h in hs:
                if exp == "noread":
                    continue
                a(f"{'ds_read_b64' if exp == 'plain' else 'ds_read_b64_tr_b16'} {pr(f+2*h)}, v{vRd} offset:{kl*10240 + h*1280 + b*32}")
        for gi in range(DLOOK):
            rd(gi)
        for gi in range(162):
            s, n = divmod(gi, 18)
            kl, b = divmod(n, 9)
            ks = 2*s + kl
            if n == 18 - DLOOK:
                a(f"s_add_u32 s{sRslot}, s{sRslot}, {WSLOT}")
                a(f"s_cmp_ge_u32 s{sRslot}, {WSLOT*NRING}")
                a(f"s_cselect_b32 s{sRslot}, 0, s{sRslot}")
                if s in (0, 1):
                    a(f"s_waitcnt vmcnt({ {0: 6, 1: 1}[s] })")
                a("s_barrier")
                if s == fs-1 and orient == 1:
                    a(f"s_cmp_eq_u32 s{sPubW}, 1")
                    a(f"s_cbranch_scc1 {N}_mflag")
                    a.label(f"{N}_mflagback")
                if s < 8:
                    a(f"v_add_u32 v{vRd}, s{sRslot}, v{vRdB}")
            if exp.startswith("w"):
                G = int(exp[1:])
                if gi % G == 0:
                    a(f"s_waitcnt lgkmcnt({max(0, min(2*(DLOOK-G), 2*(161-(gi+G-1))))})")
            else:
                a(f"s_waitcnt lgkmcnt({min(2*(DLOOK-1), 2*(161-gi))})")
            f = RING + (gi % 7) * 4
            for j in range(2):
                C = r4(acc(j, b)) if ks else "0"
                if exp == "nomfma":
                    pass
                elif orient == 0:
                    a(f"v_mfma_f32_16x16x32_bf16 {r4(acc(j,b))}, {r4(xa(j,ks))}, {r4(f)}, {C}")
                else:
                    a(f"v_mfma_f32_16x16x32_bf16 {r4(acc(j,b))}, {r4(f)}, {r4(xa(j,ks))}, {C}")
                if gi + DLOOK < 162:
                    rd(gi + DLOOK, (j,))
        a("s_nop 7")
        ret()

    def gelu8(a, A, T, pk):
        if pk:
            for i in range(4):
                a(f"v_pk_fma_f32 {pr(T+2*i)}, {pr(A+2*i)}, {pr(A+2*i)}, s[{sGC}:{sGC+1}] op_sel_hi:[1,1,0] neg_lo:[1,0,0] neg_hi:[1,0,0]")
            for i in range(4):
                a(f"v_pk_mul_f32 {pr(T+2*i)}, {pr(T+2*i)}, {pr(A+2*i)}")
            for i in range(4):
                a(f"v_exp_f32 v{T+2*i}, v{T+2*i}")
                a(f"v_exp_f32 v{T+2*i+1}, v{T+2*i+1}")
                if i:
                    a(f"v_pk_add_f32 {pr(T+2*i-2)}, {pr(T+2*i-2)}, 1.0 op_sel_hi:[1,0]")
            a(f"v_rcp_f32 v{T}, v{T}")
            a(f"v_pk_add_f32 {pr(T+6)}, {pr(T+6)}, 1.0 op_sel_hi:[1,0]")
            a(f"v_rcp_f32 v{T+1}, v{T+1}")
            for i in range(1, 4):
                a(f"v_rcp_f32 v{T+2*i}, v{T+2*i}")
                a(f"v_pk_mul_f32 {pr(A+2*i-2)}, {pr(A+2*i-2)}, {pr(T+2*i-2)}")
                a(f"v_rcp_f32 v{T+2*i+1}, v{T+2*i+1}")
            a("s_nop 0")
            a(f"v_pk_mul_f32 {pr(A+6)}, {pr(A+6)}, {pr(T+6)}")
        else:
            for i in range(8):
                a(f"v_fma_f32 v{T+i}, -v{A+i}, v{A+i}, s{sGC}")
            for i in range(8):
                a(f"v_mul_f32 v{T+i}, v{A+i}, v{T+i}")
            for i in range(8):
                a(f"v_exp_f32 v{T+i}, v{T+i}")
                if i:
                    a(f"v_add_f32 v{T+i-1}, 1.0, v{T+i-1}")
            a(f"v_rcp_f32 v{T}, v{T}")
            a(f"v_add_f32 v{T+7}, 1.0, v{T+7}")
            for i in range(1, 8):
                a(f"v_rcp_f32 v{T+i}, v{T+i}")
                a(f"v_mul_f32 v{A+i-1}, v{A+i-1}, v{T+i-1}")
            a("s_nop 0")
            a(f"v_mul_f32 v{A+7}, v{A+7}, v{T+7}")
    def phi8(a, A, T, pk):
        for i in range(8):
            a(f"v_min_f32 v{T+i}, 0, v{A+i}")
        if pk:
            for i in range(4):
                a(f"v_pk_mul_f32 {pr(T+2*i)}, {pr(T+2*i)}, s[{sL2E}:{sL2E+1}] op_sel_hi:[1,0]")
        else:
            for i in range(8):
                a(f"v_mul_f32 v{T+i}, s{sL2E}, v{T+i}")
        for i in range(8):
            a(f"v_exp_f32 v{T+i}, v{T+i}")
            a(f"v_max_f32 v{A+i}, 0, v{A+i}")
        if pk:
            for i in range(4):
                a(f"v_pk_add_f32 {pr(A+2*i)}, {pr(A+2*i)}, s[{sL2E}:{sL2E+1}] op_sel:[0,1] op_sel_hi:[1,1]")
            for i in range(4):
                a(f"v_pk_add_f32 {pr(A+2*i)}, {pr(A+2*i)}, {pr(T+2*i)}")
        else:
            for i in range(8):
                a(f"v_add_f32 v{A+i}, s{sL2E+1}, v{A+i}")
            for i in range(8):
                a(f"v_add_f32 v{A+i}, v{A+i}, v{T+i}")
    def pack8(a, A, P):
        for i in range(4):
            a(f"v_cvt_pk_bf16_f32 v{P+i}, v{A+2*i}, v{A+2*i+1}")
    TMP = RING
    STA = RING + 8
    sched9 = [[i] for i in range(9)]
    ONE = RING + 24
    def pf_extra(s):
        if not prefetch:
            return None
        if s in (1, 2, 3):
            return pf_group(XJ)
        if s == 4:
            return [f"s_mov_b32 s{PFS}, s62", f"s_and_b32 s{PFS+1}, s63, 0xffff", f"s_mov_b32 s{PFS+2}, {D*D*2}",
                    f"s_lshl_b32 s{sPf}, s2, 12", f"s_lshl_b32 s{sT4}, s{sW4}, 10", f"s_add_u32 s{sPf}, s{sPf}, s{sT4}"] + pf_group(XJ)
        return None

    for solo in (False, True):
        a.raw(".p2align 6")
        a.label(f"{N}_epi_z2_{'solo' if solo else 'side'}")
        sd = Side(solo)
        for s in range(9):
            b_ = Asm()
            if s == 0:
                lane_cg(vT, vT+1, b_)
                b_(f"v_mul_u32_u24 v{vRd}, 288, v{vT}")
                b_(f"v_lshl_add_u32 v{vRd}, v{vT+1}, 3, v{vRd}")
                b_(f"s_mul_i32 s{sT0}, s{sW4}, 9216")
                b_(f"s_add_u32 s{sT0}, s{sT0}, s{sPark}")
                b_(f"v_add_u32 v{vRd}, s{sT0}, v{vRd}")
            if s == 0:
                for r in range(4):
                    b_(f"v_mov_b32 v{ONE+r}, s{sOnes}")
            for b in sched9[s]:
                A = acc(0, b)
                gelu8(b_, A, TMP, solo)
                pb, h = ACC + 16*(b//2), b % 2
                for j in range(2):
                    for q in range(2):
                        b_(f"v_cvt_pk_bf16_f32 v{pb+4*j+2*h+q}, v{A+4*j+2*q}, v{A+4*j+2*q+1}")
                if b == 8:
                    for j in range(2):
                        b_(f"v_mov_b32 v{pb+4*j+2}, 0")
                        b_(f"v_mov_b32 v{pb+4*j+3}, 0")
                for j in range(2):
                    b_(f"ds_write_b64 v{vRd}, {pr(pb+4*j+2*h)} offset:{j*4608 + b*32}")
                if h == 1 or b == 8:
                    for j in range(2):
                        C1 = r4(STA+8*j) if b > 1 else "0"
                        C2 = r4(STA+8*j+4) if b > 1 else "0"
                        b_(f"v_mfma_f32_16x16x32_bf16 {r4(STA+8*j)}, {r4(ONE)}, {r4(pb+4*j)}, {C1}")
                        b_(f"v_mfma_f32_16x16x32_bf16 {r4(STA+8*j+4)}, {r4(pb+4*j)}, {r4(pb+4*j)}, {C2}")
            sd.slot(s, b_, lgkm=(s == 8))
        sd.finish(pad=False)
        a("s_nop 3")
        lane_cg(vT, vT+1, a)
        a(f"v_and_b32 v{vT+2}, 3, v{vT}")
        for q in range(1, 4):
            a(f"v_cmp_eq_u32 vcc, {q}, v{vT+2}")
            a("s_nop 1")
            for j in range(2):
                a(f"v_cndmask_b32 v{STA+8*j+4}, v{STA+8*j+4}, v{STA+8*j+4+q}, vcc")
        a(f"v_lshrrev_b32 v{vT+2}, 2, v{vT}")
        a(f"v_lshlrev_b32 v{vT+2}, 6, v{vT+2}")
        a(f"v_lshl_add_u32 v{vT+2}, v{vT}, 2, v{vT+2}")
        for j in range(2):
            a(f"ds_bpermute_b32 v{STA+8*j+1}, v{vT+2}, v{STA+8*j+4}")
        get_tag()
        a(f"v_mov_b32 v{vT+3}, {OOB}")
        a(f"v_cmp_gt_u32 vcc, 2, v{vT+1}")
        a(f"s_lshl_b32 s{sT0}, s{sM}, 4")
        a(f"s_add_u32 s{sT0}, s{sT0}, s{sN}")
        a(f"v_cndmask_b32 v{vT+2}, v{vT+3}, v{vL16}, vcc")
        a(f"v_cmp_eq_u32 vcc, 1, v{vT+1}")
        a(f"s_lshl_b32 s{sT0}, s{sT0}, 2")
        a(f"s_add_u32 s{sT0}, s{sT0}, s{sW4}")
        a(f"v_cndmask_b32 v{STA}, v{STA}, v{STA+8}, vcc")
        a(f"v_cndmask_b32 v{STA+1}, v{STA+1}, v{STA+9}, vcc")
        a(f"v_mov_b32 v{STA+2}, s{sTag}")
        a(f"v_mov_b32 v{STA+3}, s{sTag+1}")
        a(f"s_lshl_b32 s{sT0}, s{sT0}, 9")
        a(f"s_add_u32 s{sT0}, s{sT0}, {WS_ST}")
        a(f"buffer_store_dwordx4 {r4(STA)}, v{vT+2}, s[12:15], s{sT0} offen sc1")
        ret()

    a.raw(".p2align 6")
    a.label(f"{N}_epi_k_side")
    sd = Side(False)
    for s in range(9):
        b_ = Asm()
        if s == 0:
            b_(f"s_lshl_b32 s{sT0}, s{sW4}, 10")
            b_(f"s_add_u32 s{sT0}, s{sT0}, s{sPark}")
            b_(f"v_add_u32 v{vRd}, s{sT0}, v{vL16}")
        A = acc(0, s)
        phi8(b_, A, TMP, False)
        pack8(b_, A, A)
        b_(f"ds_write_b128 v{vRd}, {r4(A)} offset:{s*4096}")
        sd.slot(s, b_, lgkm=(s == 8))
    sd.finish()
    ret()

    for solo in (False, True):
        a.raw(".p2align 6")
        a.label(f"{N}_epi_z1_{'solo' if solo else 'side'}")
        sd = Side(solo)
        for s in range(9):
            b_ = Asm()
            if s == 0:
                b_(f"s_lshl_b32 s{sT2}, s{sM}, 4")
                b_(f"s_add_u32 s{sT2}, s{sT2}, s{sN}")
                b_(f"s_lshl_b32 s{sT2}, s{sT2}, 2")
                b_(f"s_add_u32 s{sT2}, s{sT2}, s{sW4}")
                b_(f"s_mul_i32 s{sT2}, s{sT2}, 9216")
                b_(f"s_add_u32 s{sT2 if solo else sZ1}, s{sT2}, {WS_Z1}")
            A = acc(0, s)
            gelu8(b_, A, TMP, solo)
            pack8(b_, A, A)
            if solo:
                if s % 4 == 0 and s:
                    b_(f"s_add_u32 s{sT2}, s{sT2}, 4096")
                b_(f"buffer_store_dwordx4 {r4(A)}, v{vL16}, s[12:15], s{sT2} offen offset:{(s%4)*1024}{wt}")
            if s == 6 and not solo and ep:
                b0 = Asm()
                b0(f"s_cmp_lg_u32 s{sW4}, 0")
                b0(f"s_cbranch_scc1 {N}_ep0")
                b0(f"s_lshl_b32 s{sT0}, s{sM}, 4")
                b0(f"v_mov_b32 v{vT+2}, 0")
                b0(f"buffer_load_dwordx4 {r4(STA)}, v{vT+2}, s[16:19], s{sT0} offen sc1 ;nc")
                b0.label(f"{N}_ep0")
                for l in b0.lines:
                    a.raw(l)
            if s == 8 and not solo and ep:
                b_(f"s_cmp_lg_u32 s{sW4}, 0")
                b_(f"s_cbranch_scc1 {N}_ep1")
                b_(f"v_and_b32 v{STA}, v{STA}, v{STA+1}")
                b_("s_nop 0")
                b_(f"v_and_b32 v{STA+2}, v{STA+2}, v{STA+3}")
                b_("s_nop 0")
                b_(f"v_and_b32 v{STA}, v{STA}, v{STA+2}")
                b_("s_nop 0")
                b_(f"v_readfirstlane_b32 s{sT1}, v{STA}")
                b_(f"s_and_b32 s{sT1}, s{sT1}, 0x01010100")
                b_(f"s_cmp_lg_u32 s{sT1}, 0x01010100")
                b_(f"s_cbranch_scc1 {N}_ep1")
                b_(f"v_mov_b32 v{STA}, 1")
                b_("s_nop 0")
                b_(f"v_mov_b32 v{STA+1}, {LFLAG}")
                b_(f"ds_write_b32 v{STA+1}, v{STA}")
                b_.label(f"{N}_ep1")
            sd.slot(s, b_, lgkm=(s == 8))
        ret()

    a.raw(".p2align 6")
    a.label(f"{N}_epi_q")
    lane_cg(vT, vT+1)
    a(f"v_lshlrev_b32 v{vRd}, 6, v{vT}")
    a(f"v_lshl_add_u32 v{vRd}, v{vT+1}, 4, v{vRd}")
    a(f"s_mul_i32 s{sT2}, s{sN}, {5*PLANE}")
    a(f"s_lshl_b32 s{sT3}, s{sM}, 13")
    a(f"s_add_u32 s{sT2}, s{sT2}, s{sT3}")
    a(f"s_lshl_b32 s{sT3}, s{sW4}, 11")
    a(f"s_add_u32 s{sT2}, s{sT2}, s{sT3}")
    a(f"s_add_u32 s{sT2}, s{sT2}, {WS_PQ}")
    QO = RING + 8
    for p in range(5):
        Q = QO + (p % 2) * 8
        for h in range(2):
            b = 2*p + h
            if b < 9:
                A = acc(0, b)
                phi8(a, A, TMP, True)
                for j in range(2):
                    a(f"v_cvt_pk_bf16_f32 v{Q+j*4+h*2}, v{A+j*4}, v{A+j*4+1}")
                    a(f"v_cvt_pk_bf16_f32 v{Q+j*4+h*2+1}, v{A+j*4+2}, v{A+j*4+3}")
            else:
                for j in range(2):
                    a(f"v_mov_b32 v{Q+j*4+2}, 0")
                    a(f"v_mov_b32 v{Q+j*4+3}, 0")
        for j in range(2):
            swap_pair(a, Q + j*4)
            a(f"buffer_store_dwordx4 {r4(Q+j*4)}, v{vRd}, s[12:15], s{sT2} offen offset:{j*1024}{wt}")
        a(f"s_add_u32 s{sT2}, s{sT2}, {PLANE}")
    ret()

    a.raw(".p2align 6")
    a.label(f"{N}_final")
    lane_cg(vT, vT+1)
    a(f"v_lshrrev_b32 v{vT+2}, 2, v{vT}")
    a(f"v_lshl_add_u32 v{vT+2}, v{vT+1}, 3, v{vT+2}")
    a(f"v_mul_u32_u24 v{vT+2}, 288, v{vT+2}")
    a(f"v_and_b32 v{vT+3}, 3, v{vT}")
    a(f"v_lshl_add_u32 v{vT+2}, v{vT+3}, 3, v{vT+2}")
    a(f"s_mul_i32 s{sT0}, s{sW4}, 9216")
    a(f"s_add_u32 s{sT0}, s{sT0}, s{sPark}")
    a(f"v_add_u32 v{vRd}, s{sT0}, v{vT+2}")
    for b in range(9):
        for h in range(2):
            a(f"ds_read_b64_tr_b16 {pr(XA+4*b+2*h)}, v{vRd} offset:{h*1152 + b*32}")
        if b == 5:
            a("s_waitcnt lgkmcnt(4)")
    if fine: st.mark(1)
    get_tag()
    GR = XA + 64
    RS = XA + 40
    a(f"v_lshrrev_b32 v{vT+2}, 9, v{vL16}")
    a(f"v_lshlrev_b32 v{vT+2}, 11, v{vT+2}")
    a(f"v_and_b32 v{vT+3}, 0x1f0, v{vL16}")
    a(f"v_add_u32 v{vT+2}, v{vT+2}, v{vT+3}")
    a(f"s_lshl_b32 s{sT2}, s{sM}, 15")
    a(f"s_lshl_b32 s{sT1}, s{sW4}, 9")
    a(f"s_add_u32 s{sT2}, s{sT2}, s{sT1}")
    a(f"s_add_u32 s{sT2}, s{sT2}, {WS_ST}")
    a(f"s_mov_b32 s{sSpin}, 0")
    a.label(f"{N}_fload")
    a(f"s_mov_b32 s{sT3}, s{sT2}")
    for q in range(8):
        a(f"buffer_load_dwordx4 {r4(GR+4*q)}, v{vT+2}, s[12:15], s{sT3} offen sc1")
        if q < 7:
            a(f"s_add_u32 s{sT3}, s{sT3}, 4096")
    a(f"s_and_b32 s{sT1}, s{sW4}, 1")
    a(f"s_lshl_b32 s{sT1}, s{sT1}, 2")
    a(f"v_or_b32 v{TMP+3}, s{sT1}, v{vT+1}")
    a(f"v_and_b32 v{TMP+4}, 7, v{vT}")
    a(f"v_xor_b32 v{TMP+3}, v{TMP+3}, v{TMP+4}")
    a(f"v_lshlrev_b32 v{TMP+3}, 4, v{TMP+3}")
    a(f"v_lshl_add_u32 v{vRd}, v{vT}, 7, v{TMP+3}")
    a(f"s_lshl_b32 s{sT0}, s{sN}, 5")
    a(f"s_lshl_b32 s{sT1}, s{sM}, 1")
    a(f"s_add_u32 s{sT0}, s{sT0}, s{sT1}")
    a(f"s_lshr_b32 s{sT1}, s{sW4}, 1")
    a(f"s_add_u32 s{sT0}, s{sT0}, s{sT1}")
    a(f"s_mul_i32 s{sT0}, s{sT0}, 18432")
    a(f"s_add_u32 s{sT0}, s{sT0}, {WS_Z2T}")
    a(f"s_lshl_b32 s{sT1}, s{sW8}, 8")
    a(f"s_add_u32 s{sT1}, s{sT1}, {LSTAT}")
    a(f"v_lshrrev_b32 v{TMP+5}, 2, v{vT+3}")
    a(f"v_add_u32 v{TMP+5}, s{sT1}, v{TMP+5}")
    a(f"v_lshlrev_b32 v{TMP+6}, 5, v{vT+1}")
    a(f"v_add_u32 v{TMP+6}, s{sT1}, v{TMP+6}")
    a("s_waitcnt vmcnt(0)")
    for q in range(8):
        a(f"v_xor_b32 v{GR+4*q+2}, s{sTag}, v{GR+4*q+2}")
        a(f"v_xor_b32 v{GR+4*q+3}, s{sTag+1}, v{GR+4*q+3}")
    for q in range(8):
        if q:
            a(f"v_or3_b32 v{GR+2}, v{GR+2}, v{GR+4*q+2}, v{GR+4*q+3}")
            a(f"v_pk_add_f32 {pr(GR)}, {pr(GR)}, {pr(GR+4*q)}")
        else:
            a(f"v_or_b32 v{GR+2}, v{GR+2}, v{GR+3}")
    a(f"v_cmp_ne_u32 vcc, 0, v{GR+2}")
    a(f"v_mov_b32 v{GR+4}, v{GR}")
    a(f"v_mov_b32 v{GR+5}, v{GR+1}")
    a("s_nop 2")
    a("s_cmp_lg_u64 vcc, 0")
    a(f"s_cbranch_scc1 {N}_fwait")
    a.label(f"{N}_fgo")
    b = Asm(); pend.append(b)
    b.label(f"{N}_fwait")
    b(f"v_lshlrev_b32 v{TMP}, 11, v{vT}")
    b.label(f"{N}_fpoll")
    b(f"s_sleep {pslp}")
    b(f"buffer_load_dword v{TMP+1}, v{TMP}, s[12:15], s{sT2} offen offset:8 sc1")
    b(f"s_add_u32 s{sSpin}, s{sSpin}, 1")
    b("s_waitcnt vmcnt(0)")
    b(f"v_cmp_ne_u32 vcc, s{sTag}, v{TMP+1}")
    b(f"s_cmp_gt_u32 s{sSpin}, 0x20000")
    b(f"s_cbranch_scc1 {N}_fgo")
    b("s_nop 2")
    b("s_cmp_lg_u64 vcc, 0")
    b(f"s_cbranch_scc1 {N}_fpoll")
    b(f"s_branch {N}_fload")
    if fine: st.mark(3)
    a(f"v_permlane32_swap_b32 v{GR}, v{GR+4}")
    a(f"v_permlane32_swap_b32 v{GR+1}, v{GR+5}")
    a("s_nop 1")
    a(f"v_pk_add_f32 {pr(GR)}, {pr(GR)}, {pr(GR+4)}")
    inv = f2h(1.0/2304)
    a(f"v_mul_f32 v{GR}, {inv}, v{GR}")
    a(f"v_mul_f32 v{GR+1}, {inv}, v{GR+1}")
    a(f"v_fma_f32 v{GR+1}, -v{GR}, v{GR}, v{GR+1}")
    a(f"v_max_f32 v{GR+1}, 0, v{GR+1}")
    a(f"v_add_f32 v{GR+1}, {f2h(1e-5*GK*GK)}, v{GR+1}")
    a(f"v_rsq_f32 v{GR+1}, v{GR+1}")
    a("s_nop 0")
    a(f"v_mul_f32 v{GR+1}, {f2h(1.0/GK)}, v{GR+1}")
    a(f"v_mul_f32 v{GR}, v{GR}, v{GR+1}")
    a(f"v_sub_f32 v{GR}, 0, v{GR}")
    a(f"ds_write_b32 v{TMP+5}, v{GR+1}")
    a(f"ds_write_b32 v{TMP+5}, v{GR} offset:128")
    for q in range(4):
        a(f"ds_read_b128 {r4(RS+4*q)}, v{TMP+6} offset:{(q>>1)*128 + (q&1)*16}")
    if prefetch:
        a(f"s_cmp_eq_u32 s{sRole}, 1")
        a(f"s_cselect_b32 s{sT1}, s{sG}, s{sRole}")
        a(f"s_lshl_b32 s{sT2}, s{sM}, 2")
        a(f"s_add_u32 s{sT2}, s{sT2}, s{sCG}")
        a(f"s_lshl_b32 s{sT2}, s{sT2}, 2")
        a(f"s_add_u32 s{sT1}, s{sT1}, s{sT2}")
        a(f"s_lshl_b32 s{sT1}, s{sT1}, 2")
        a(f"s_add_u32 s{sT1}, s{sT1}, s{sW4}")
        a(f"s_lshl_b32 s{sPf}, s{sT1}, 13")
        for i in range(8):
            if i == 4:
                a(f"s_add_u32 s{sPf}, s{sPf}, 4096")
            a(f"buffer_load_dwordx4 {r4(XA+60)}, v{vL16}, s[{PFS}:{PFS+3}], s{sPf} offen offset:{(i%4)*1024}")
        srd(a, PFS, 60, FH*D*2)
        a(f"s_mul_i32 s{sPf}, s{sT1}, 3072")
        for i in range(3):
            a(f"buffer_load_dwordx4 {r4(XA+60)}, v{vL16}, s[{PFS}:{PFS+3}], s{sPf} offen offset:{i*1024}")
        srd(a, PFS, 62, D*D*2)
        a(f"s_lshl_b32 s{sPf}, s{sT1}, 10")
        a(f"buffer_load_dwordx4 {r4(XA+60)}, v{vL16}, s[{PFS}:{PFS+3}], s{sPf} offen")
    a("s_waitcnt lgkmcnt(0)")
    for b in range(9):
        P = XA + 4*b
        for i in range(4):
            a(f"v_lshlrev_b32 v{TMP+2*i}, 16, v{P+i}")
            a(f"v_and_b32 v{TMP+2*i+1}, 0xffff0000, v{P+i}")
        for i in range(4):
            a(f"v_pk_fma_f32 {pr(TMP+2*i)}, {pr(TMP+2*i)}, {pr(RS+2*i)}, {pr(RS+8+2*i)}")
        pack8(a, TMP, P)
        a(f"buffer_store_dwordx4 {r4(P)}, v{vRd}, s[12:15], s{sT0} offen offset:{(b%2)*2048}{wt}")
        if b % 2:
            a(f"s_add_u32 s{sT0}, s{sT0}, 4096")
    ret()

    a.raw(".p2align 6")
    a.label(f"{N}_epi_v")
    sd = Side(False)
    b_ = Asm()
    b_(f"s_lshl_b32 s{sT0}, s{sW4}, 10")
    b_(f"s_add_u32 s{sT0}, s{sT0}, {PARK1}")
    b_(f"v_add_u32 v{vRd}, s{sT0}, v{vL16}")
    for b in range(9):
        A = acc(0, b)
        pack8(b_, A, A)
        b_(f"ds_write_b128 v{vRd}, {r4(A)} offset:{b*4096}")
    sd.slot(0, b_, lgkm=True)
    PK = XA; VV = XA + 64; KA = ACC
    b_ = Asm()
    b_(f"s_lshl_b32 s{sT0}, s{sW4}, 13")
    b_(f"s_add_u32 s{sT1}, s{sT0}, {PARK0-4096}")
    b_(f"v_add_u32 v{vT+1}, s{sT1}, v{vL16}")
    b_(f"s_add_u32 s{sT1}, s{sT0}, {PARK1}")
    b_(f"v_add_u32 v{vT+2}, s{sT1}, v{vL16}")
    for i in range(16):
        b_(f"ds_read_b128 {r4(PK+4*i)}, v{vT+1} offset:{i*1024}")
        if i == 11:
            b_("s_waitcnt lgkmcnt(0)")
    b_("s_waitcnt lgkmcnt(0)")
    for i in range(12):
        b_(f"ds_read_b128 {r4(VV+4*i)}, v{vT+2} offset:{i*1024}")
    ON = RING
    for r in range(4):
        b_(f"v_mov_b32 v{ON+r}, 0x3f803f80")
    b_("s_waitcnt lgkmcnt(0)")
    sd.slot(1, b_)
    blocks = [(0,0),(1,0),(2,0),(1,1),(2,1),(3,1),(2,2),(3,2)]
    for half in range(2):
        b_ = Asm()
        for rg in (2*half, 2*half+1):
            for i, (pa, vb) in enumerate(blocks):
                C = r4(KA+4*i) if rg else "0"
                b_(f"v_mfma_f32_16x16x32_bf16 {r4(KA+4*i)}, {r4(PK+(pa*4+rg)*4)}, {r4(VV+(vb*4+rg)*4)}, {C}")
            for i in range(3):
                C = r4(KA+32+4*i) if rg else "0"
                b_(f"v_mfma_f32_16x16x32_bf16 {r4(KA+32+4*i)}, {r4(PK+((1+i)*4+rg)*4)}, {r4(ON)}, {C}")
        if half == 0:
            sd.slot(2, b_)
    b_(f"s_lshl_b32 s{sT0}, s{sCG}, 4")
    b_(f"s_add_u32 s{sT0}, s{sT0}, s{sM}")
    b_(f"s_mul_i32 s{sT0}, s{sT0}, 36864")
    b_(f"s_add_u32 s{sT0}, s{sT0}, {WS_KVP}")
    b_(f"s_mul_i32 s{sT1}, s{sW4}, 6144")
    b_(f"s_add_u32 s{sT1}, s{sT1}, s{sT0}")
    b_(f"s_lshl_b32 s{sT2}, s{sW4}, 11")
    b_(f"s_add_u32 s{sT2}, s{sT2}, s{sT0}")
    b_(f"s_add_u32 s{sT2}, s{sT2}, {27*1024}")
    b_("s_nop 4")
    for i in range(6):
        if i == 4:
            b_(f"s_add_u32 s{sT1}, s{sT1}, 4096")
        b_(f"buffer_store_dwordx4 {r4(KA+4*i)}, v{vL16}, s[12:15], s{sT1} offen offset:{(i%4)*1024} sc1")
    for i in range(2):
        b_(f"buffer_store_dwordx4 {r4(KA+32+4*i)}, v{vL16}, s[12:15], s{sT2} offen offset:{i*1024} sc1")
    b_(f"s_cmp_lg_u32 s{sW4}, 3")
    b_(f"s_cbranch_scc1 {N}_kv3")
    for i in range(2):
        b_(f"buffer_store_dwordx4 {r4(KA+24+4*i)}, v{vL16}, s[12:15], s{sT1} offen offset:{2048+i*1024} sc1 ;nc")
    b_(f"buffer_store_dwordx4 {r4(KA+40)}, v{vL16}, s[12:15], s{sT2} offen offset:2048 sc1 ;nc")
    b_.label(f"{N}_kv3")
    sd.slot(3, b_)
    sd.slot(4)
    sd.slot(5)
    for s in range(6, 9):
        sd.slot(s)
    st.mark(5)
    a(f"s_cmp_ge_u32 s{sM}, 9")
    a(f"s_cbranch_scc1 {N}_done")
    lane_cg(vT+1, vT+2)
    get_tag()
    a(f"v_lshlrev_b32 v{TMP}, 8, v{vT+1}")
    a(f"s_lshl_b32 s{sT0}, s{sCG}, 12")
    a(f"s_add_u32 s{sT0}, s{sT0}, {WS_KFL}")
    a(f"s_mov_b32 s{sSpin}, 0")
    a.label(f"{N}_kpoll")
    a(f"buffer_load_dword v{TMP+1}, v{TMP}, s[12:15], s{sT0} offen sc1")
    a(f"s_add_u32 s{sSpin}, s{sSpin}, 1")
    a("s_waitcnt vmcnt(0)")
    a(f"v_cmp_eq_u32 vcc, s{sTag}, v{TMP+1}")
    a("s_nop 4")
    a("s_cmp_eq_u64 vcc, -1")
    a(f"s_cbranch_scc1 {N}_kgo")
    a("s_sleep 8")
    a(f"s_cmp_lt_u32 s{sSpin}, 0x20000")
    a(f"s_cbranch_scc1 {N}_kpoll")
    a.label(f"{N}_kgo")
    tab = 0
    for b in range(9):
        tab |= PB[b] << (2*b)
    a(f"s_lshl_b32 s{sT0}, s{sM}, 1")
    a(f"s_lshr_b32 s{sT0}, {tab:#x}, s{sT0}")
    a(f"s_and_b32 s{sT0}, s{sT0}, 3")
    a(f"s_and_b32 s{sT1}, s{sW4}, 1")
    a(f"s_add_u32 s{sT0}, s{sT0}, s{sT1}")
    a(f"s_lshl_b32 s{sT0}, s{sT0}, 1")
    a(f"s_mul_i32 s{sT4}, s{sCG}, {16*36864}")
    a(f"s_add_u32 s{sT4}, s{sT4}, {WS_KVP}")
    LD = XA
    for h in range(2):
        a(f"s_add_u32 s{sT1}, s{sT0}, {h}")
        a(f"s_sub_u32 s{sT2}, s{sT1}, s{sM}")
        a(f"s_add_u32 s{sT2}, s{sT2}, 1")
        a(f"s_mul_i32 s{sT3}, s{sM}, 3")
        a(f"s_add_u32 s{sT3}, s{sT3}, s{sT2}")
        a(f"s_add_u32 s{sPf}, s{sT1}, 27")
        a(f"s_cmp_ge_u32 s{sW4}, 2")
        a(f"s_cselect_b32 s{sT3}, s{sPf}, s{sT3}")
        a(f"s_lshl_b32 s{sT3}, s{sT3}, 10")
        a(f"s_add_u32 s{sT3}, s{sT3}, s{sT4}")
        a(f"s_cmp_lt_u32 s{sT2}, 3")
        a(f"s_cselect_b32 s{sT3}, s{sT3}, {OOB}")
        a(f"s_cmp_lt_u32 s{sT1}, 9")
        a(f"s_cselect_b32 s{sT3}, s{sT3}, {OOB}")
        for mm in range(16):
            a(f"buffer_load_dwordx4 {r4(LD+(h*16+mm)*4)}, v{vL16}, s[12:15], s{sT3} offen sc1")
            a(f"s_add_u32 s{sT3}, s{sT3}, 36864")
    a(f"s_lshl_b32 s{sT1}, s{sM}, 4")
    a(f"v_add_u32 v{TMP}, s{sT1}, v{vT+1}")
    a(f"v_mul_u32_u24 v{TMP}, 3641, v{TMP}")
    a(f"v_lshrrev_b32 v{TMP}, 16, v{TMP}")
    a(f"s_lshl_b32 s{sT1}, s{sT0}, 4")
    a(f"v_lshlrev_b32 v{TMP+1}, 2, v{vT+2}")
    a(f"v_add_u32 v{TMP+1}, s{sT1}, v{TMP+1}")
    for h in range(2):
        for mm in range(1, 16):
            a(f"s_waitcnt vmcnt({31 - (h*16+mm)})")
            for i in range(2):
                a(f"v_pk_add_f32 {pr(LD+h*64+2*i)}, {pr(LD+h*64+2*i)}, {pr(LD+(h*16+mm)*4+2*i)}")
        for r in range(4):
            a(f"v_add_u32 v{TMP+2}, {16*h+r}, v{TMP+1}")
            a(f"v_mul_u32_u24 v{TMP+2}, 3641, v{TMP+2}")
            a(f"v_lshrrev_b32 v{TMP+2}, 16, v{TMP+2}")
            a(f"v_cmp_eq_u32 vcc, v{TMP+2}, v{TMP}")
            a("s_nop 1")
            a(f"v_cndmask_b32 v{LD+h*64+r}, 0, v{LD+h*64+r}, vcc")
        a(f"v_cvt_pk_bf16_f32 v{STA+2*h}, v{LD+h*64}, v{LD+h*64+1}")
        a(f"v_cvt_pk_bf16_f32 v{STA+2*h+1}, v{LD+h*64+2}, v{LD+h*64+3}")
    swap_pair(a, STA)
    a(f"s_mul_i32 s{sT1}, s{sCG}, 36864")
    a(f"s_lshl_b32 s{sT2}, s{sM}, 12")
    a(f"s_add_u32 s{sT1}, s{sT1}, s{sT2}")
    a(f"s_lshl_b32 s{sT2}, s{sW4}, 10")
    a(f"s_add_u32 s{sT1}, s{sT1}, s{sT2}")
    a(f"s_add_u32 s{sT1}, s{sT1}, {WS_KVF}")
    a(f"buffer_store_dwordx4 {r4(STA)}, v{vL16}, s[12:15], s{sT1} offen{wt}")
    a(f"s_branch {N}_done")
    for b in pend:
        a.lines += b.lines
    a.label(f"{N}_mflag")
    a(f"s_lshl_b32 s{sT0}, s{sCG}, 4")
    a(f"s_add_u32 s{sT0}, s{sT0}, s{sM}")
    a(f"s_lshl_b32 s{sT0}, s{sT0}, 8")
    a(f"s_add_u32 s{sT0}, s{sT0}, {WS_KFL}")
    a(f"v_mov_b32 v{vT}, s{sTag}")
    a(f"v_lshrrev_b32 v{vT+1}, 2, v{vL16}")
    a(f"buffer_store_dword v{vT}, v{vT+1}, s[12:15], s{sT0} offen sc1")
    a(f"s_branch {N}_mflagback")
    a.label(f"{N}_nonce")
    a(f"s_memrealtime s[{sTag}:{sTag+1}]")
    a(f"v_mov_b32 v{RING+1}, 0")
    a("s_waitcnt lgkmcnt(0)")
    a(f"s_or_b32 s{sTag}, s{sTag}, 1")
    a(f"v_mov_b32 v{RING}, s{sTag}")
    a("s_mov_b64 exec, 1")
    a(f"buffer_store_dword v{RING}, v{RING+1}, s[16:19], s{sTagOff} offen sc1")
    a("s_mov_b64 exec, -1")
    a(f"s_branch {N}_nonceback")
    a.label(f"{N}_nonce2")
    a(f"s_mov_b32 s{sSpin}, 0")
    a.label(f"{N}_nonce3")
    a("s_waitcnt vmcnt(0)")
    a(f"v_readfirstlane_b32 s{sT0}, v{vT}")
    a(f"s_add_u32 s{sSpin}, s{sSpin}, 1")
    a(f"s_cmp_lg_u32 s{sT0}, 0")
    a(f"s_cbranch_scc1 {N}_nonce4")
    a(f"s_cmp_gt_u32 s{sSpin}, 0x20000")
    a(f"s_cbranch_scc1 {N}_nonce4")
    a("s_sleep 8")
    a(f"buffer_load_dword v{vT}, v{vT+1}, s[16:19], s{sTagOff} offen sc1")
    a(f"s_branch {N}_nonce3")
    a.label(f"{N}_nonce4")
    a(f"v_mov_b32 v{vT+1}, {LFLAG}")
    a(f"ds_write_b32 v{vT+1}, v{vT}")
    a("s_waitcnt lgkmcnt(0)")
    a(f"s_branch {N}_nonce2back")
    return NV
```

```python
import struct
from asmlib import *
from layout import *
WT = " sc1"

SLOT = 34816
NSLOT = 4
K2_LDS = SLOT * NSLOT

def r4(x): return f"v[{x}:{x+3}]"

def swap_pair(a, Q):
    a("s_nop 1")
    a(f"v_permlane32_swap_b32 v{Q}, v{Q+2}")
    a(f"v_permlane32_swap_b32 v{Q+1}, v{Q+3}")
    a("s_nop 0")
    a(f"v_permlane16_swap_b32 v{Q}, v{Q+2}")
    a(f"v_permlane16_swap_b32 v{Q+1}, v{Q+3}")

def gen_k2(a, name="k2_kernel", side=True, stamps=False, UNR=4):
    st = Stamps(a, stamps, 1)
    ACC = 0
    FR = 72
    Z1R = 160
    vW0, vW1, vZ0, vZ1 = 196, 197, 198, 199
    bW0, bW1, bZ0, bZ1 = 200, 201, 202, 203
    vT0, vT1, vT2, vT3 = 204, 205, 206, 207
    vLane, vC, vG = 208, 209, 210
    vSt, vSt1 = 211, 212
    vBias0, vBias1 = 214, 215
    NV = 216
    def acc(j, b): return ACC + (j*9+b)*4
    def frW(s, j): return FR + s*44 + j*4
    def frZ(s, b): return FR + s*44 + 8 + b*4
    kernel_header(a, name)
    a("s_cmp_ge_u32 s2, 256")
    a(f"s_cbranch_scc1 {name}_end")
    st.mark(0)
    st.markrt(6)
    a("s_load_dwordx4 s[4:7], s[0:1], 40")
    a("s_load_dwordx2 s[8:9], s[0:1], 80")
    a(f"v_lshrrev_b32 v{vT0}, 6, v0")
    a(f"v_and_b32 v{vLane}, 63, v0")
    a(f"v_readfirstlane_b32 s29, v{vT0}")
    a("s_and_b32 s24, s2, 7")
    a("s_lshr_b32 s25, s2, 3")
    a("s_and_b32 s26, s24, 1")
    a("s_lshl_b32 s26, s26, 3")
    a("s_and_b32 s27, s25, 7")
    a("s_add_u32 s26, s26, s27")
    a("s_lshr_b32 s27, s24, 1")
    a("s_lshl_b32 s27, s27, 2")
    a("s_lshr_b32 s28, s25, 3")
    a("s_add_u32 s27, s27, s28")
    a("s_lshl_b32 s30, s24, 2")
    a(f"v_and_b32 v{vC}, 15, v{vLane}")
    a(f"v_lshrrev_b32 v{vG}, 4, v{vLane}")
    a(f"v_lshrrev_b32 v{vT0}, 2, v{vC}")
    a(f"v_sub_u32 v{vT0}, 0, v{vT0}")
    a(f"v_and_b32 v{vT0}, 3, v{vT0}")
    a(f"v_xor_b32 v{vT1}, v{vT0}, v{vG}")
    a(f"v_lshlrev_b32 v{vT1}, 4, v{vT1}")
    a(f"v_lshl_add_u32 v{vSt}, v{vC}, 6, v{vT1}")
    a(f"v_lshrrev_b32 v{vT1}, 1, v{vG}")
    a(f"v_xor_b32 v{vT1}, v{vT0}, v{vT1}")
    a(f"v_lshlrev_b32 v{vT1}, 4, v{vT1}")
    a(f"v_lshl_add_u32 v{vSt1}, v{vC}, 6, v{vT1}")
    a(f"v_and_b32 v{vT1}, 1, v{vG}")
    a(f"v_lshl_add_u32 v{vSt1}, v{vT1}, 3, v{vSt1}")
    a("s_waitcnt lgkmcnt(0)")
    srd(a, 12, 4, S*S*2)
    srd(a, 16, 8, WS_END)
    srd(a, 20, 6, S*2)
    a("s_cmp_ge_u32 s29, 4")
    a(f"s_cbranch_scc1 {name}_loader")
    a("s_lshl_b32 s32, s26, 7")
    a("s_lshl_b32 s33, s29, 5")
    a("s_add_u32 s32, s32, s33")
    a(f"v_add_u32 v{vT1}, s32, v{vC}")
    a(f"v_lshlrev_b32 v{vT2}, 1, v{vT1}")
    a(f"buffer_load_ushort v{vBias0}, v{vT2}, s[20:23], 0 offen")
    a(f"buffer_load_ushort v{vBias1}, v{vT2}, s[20:23], 0 offen offset:32")
    a("s_lshl_b32 s31, s26, 4")
    a("s_add_u32 s31, s31, s27")
    a("s_lshl_b32 s31, s31, 2")
    a("s_add_u32 s31, s31, s29")
    a("s_mul_i32 s31, s31, 9216")
    a(f"s_add_u32 s31, s31, {WS_Z1}")
    a("s_mul_i32 s35, s27, 9")
    a("s_lshr_b32 s35, s35, 1")
    a(f"s_mul_i32 s35, s35, {PLANE}")
    a("s_lshl_b32 s33, s32, 6")
    a("s_add_u32 s35, s35, s33")
    a(f"s_add_u32 s35, s35, {WS_HO}")
    a(f"v_and_b32 v{vT0}, 7, v{vC}")
    a(f"v_xor_b32 v{vT0}, v{vT0}, v{vG}")
    a(f"v_lshlrev_b32 v{vT0}, 4, v{vT0}")
    a(f"v_lshl_add_u32 v{vT0}, v{vC}, 7, v{vT0}")
    a(f"v_xor_b32 v{vT2}, 64, v{vT0}")
    a("s_lshl_b32 s33, s29, 12")
    a(f"v_add_u32 v{bW0}, s33, v{vT0}")
    a(f"v_add_u32 v{bW1}, s33, v{vT2}")
    a(f"v_add_u32 v{bZ0}, 16384, v{vT0}")
    a(f"v_add_u32 v{bZ1}, 16384, v{vT2}")
    a(f"v_lshlrev_b32 v{vT3}, 4, v{vLane}")
    a("s_waitcnt vmcnt(0)")
    a(f"v_lshlrev_b32 v{vBias0}, 16, v{vBias0}")
    a(f"v_lshlrev_b32 v{vBias1}, 16, v{vBias1}")
    ik = hex(struct.unpack("<I", struct.pack("<f", 1.0/GK))[0])
    a(f"v_mul_f32 v{vBias0}, {ik}, v{vBias0}")
    a(f"v_mul_f32 v{vBias1}, {ik}, v{vBias1}")
    for j in range(2):
        for i in range(36):
            a(f"v_mov_b32 v{ACC+j*36+i}, v{vBias0+j}")
    a("s_mov_b32 s36, 0")
    st.mark(1)
    a("s_barrier")
    st.mark(2)
    def reads(s, vW, vZ):
        L = [f"ds_read_b128 {r4(frW(s,j))}, v{vW} offset:{j*2048}" for j in range(2)]
        L += [f"ds_read_b128 {r4(frZ(s,b))}, v{vZ} offset:{b*2048}" for b in range(9)]
        return L
    for r in reads(0, bW0, bZ0):
        a(r)
    a(f"s_mov_b32 s37, {32//UNR}")
    a.raw(".p2align 6")
    a.label(f"{name}_loop")
    def half(su, rl):
        idx = 0
        for b in range(9):
            for j in range(2):
                if j == 0:
                    a(f"s_waitcnt lgkmcnt({8-b+min(idx,11)})")
                a(f"v_mfma_f32_16x16x32_bf16 {r4(acc(j,b))}, {r4(frZ(su,b))}, {r4(frW(su,j))}, {r4(acc(j,b))}")
                if idx < 11:
                    a(rl[idx])
                idx += 1
    for u in range(UNR):
        a(f"v_add_u32 v{vW1}, s36, v{bW1}")
        a(f"v_add_u32 v{vZ1}, s36, v{bZ1}")
        a(f"s_add_u32 s36, s36, {SLOT}")
        a(f"s_cmp_ge_u32 s36, {K2_LDS}")
        a("s_cselect_b32 s36, 0, s36")
        a(f"v_add_u32 v{vW0}, s36, v{bW0}")
        a(f"v_add_u32 v{vZ0}, s36, v{bZ0}")
        half(0, reads(1, vW1, vZ1))
        a("s_barrier")
        if u == 0:
            a("s_cmp_eq_u32 s37, 1")
            a(f"s_cbranch_scc1 {name}_z1")
            a.label(f"{name}_z1back")
        half(1, reads(0, vW0, vZ0))
    a("s_sub_u32 s37, s37, 1")
    a("s_cmp_lg_u32 s37, 0")
    a(f"s_cbranch_scc1 {name}_loop")
    st.mark(3)
    a("s_waitcnt vmcnt(0) lgkmcnt(0)")
    a("s_bitcmp1_b32 s27, 0")
    a(f"s_cbranch_scc1 {name}_epi1")
    for par in range(2):
        if par:
            a.label(f"{name}_epi1")
            a(f"v_xor_b32 v{vSt1}, 32, v{vSt1}")
        for j in range(2):
            for b in range(9):
                A = acc(j, b); P = FR + (j*9+b)*2; Z = Z1R + b*4 + j*2
                for h in range(2):
                    a(f"v_lshlrev_b32 v{vT0}, 16, v{Z+h}")
                    a(f"v_and_b32 v{vT1}, 0xffff0000, v{Z+h}")
                    a(f"v_pk_mul_f32 v[{A+2*h}:{A+2*h+1}], v[{A+2*h}:{A+2*h+1}], v[{vT0}:{vT1}]")
                    a(f"v_cvt_pk_bf16_f32 v{P+h}, v{A+2*h}, v{A+2*h+1}")
                single = (b == (0 if par else 8))
                if single:
                    pl = 0 if par else 4
                    a(f"s_add_u32 s34, s35, {pl*PLANE + j*1024}")
                    a(f"buffer_store_dwordx2 v[{P}:{P+1}], v{vSt1}, s[16:19], s34 offen{WT}")
                elif (b + par) % 2 == 1 - 0 and (b - par) % 2 == 1:
                    Q = P - 2
                    pl = (b + par) // 2
                    a(f"s_add_u32 s34, s35, {pl*PLANE + j*1024}")
                    swap_pair(a, Q)
                    a(f"buffer_store_dwordx4 v[{Q}:{Q+3}], v{vSt}, s[16:19], s34 offen{WT}")
        st.mark(4)
        if stamps:
            a("s_waitcnt vmcnt(0)")
        st.mark(5)
        st.markrt(7)
        st.dump(8, 29, vT0, vT1)
        a("s_endpgm")
    a.label(f"{name}_z1")
    for i in range(9):
        if i % 4 == 0 and i:
            a("s_add_u32 s31, s31, 4096")
        a(f"buffer_load_dwordx4 {r4(Z1R+4*i)}, v{vT3}, s[16:19], s31 offen offset:{(i%4)*1024}")
    a(f"s_branch {name}_z1back")
    a.label(f"{name}_loader")
    a(f"v_lshrrev_b32 v{vT0}, 3, v{vLane}")
    a(f"v_and_b32 v{vT1}, 7, v{vLane}")
    a(f"v_xor_b32 v{vT1}, v{vT1}, v{vT0}")
    a(f"v_lshlrev_b32 v{vT1}, 4, v{vT1}")
    a("s_lshl_b32 s31, s26, 7")
    a(f"v_add_u32 v{vT0}, s31, v{vT0}")
    LW = 196
    a(f"v_lshl_add_u32 v{LW}, v{vT0}, 12, v{vT1}")
    for p in range(1, 4):
        a(f"v_add_u32 v{LW+p}, {p*(32768-1024)}, v{LW}")
    a(f"v_lshlrev_b32 v{LW+4}, 4, v{vLane}")
    a(f"s_mul_i32 s32, s27, {32*18432}")
    a(f"s_add_u32 s32, s32, {WS_Z2T}")
    a("s_mov_b32 s36, 0")
    a("s_cmp_eq_u32 s29, 5")
    a(f"s_cbranch_scc1 {name}_loader1")
    for L in range(2):
        if L == 1:
            a.label(f"{name}_loader1")
        def issue():
            a("s_lshl_b32 s33, s30, 7")
            a("s_mul_i32 s34, s30, 18432")
            a("s_add_u32 s34, s34, s32")
            if L == 0:
                for g in range(4):
                    a(f"s_add_u32 m0, s36, {g*4096}")
                    if g:
                        a("s_add_u32 s33, s33, 131072")
                    else:
                        a("s_nop 0")
                    for p in range(4):
                        a(f"buffer_load_dwordx4 v{LW+p}, s[12:15], s33 offen offset:{p*1024} lds")
                a(f"s_add_u32 m0, s36, {16384+16384}")
                a("s_add_u32 s34, s34, 16384")
                a(f"buffer_load_dwordx4 v{LW+4}, s[16:19], s34 offen offset:1024 lds")
            else:
                for g in range(5):
                    a(f"s_add_u32 m0, s36, {16384+g*4096}")
                    if g:
                        a("s_add_u32 s34, s34, 4096")
                    else:
                        a("s_nop 0")
                    for p in range(4 if g < 4 else 1):
                        a(f"buffer_load_dwordx4 v{LW+4}, s[16:19], s34 offen offset:{p*1024} lds")
            a("s_add_u32 s30, s30, 1")
            a("s_and_b32 s30, s30, 31")
            a(f"s_add_u32 s36, s36, {SLOT}")
            a(f"s_cmp_ge_u32 s36, {K2_LDS}")
            a("s_cselect_b32 s36, 0, s36")
        issue()
        issue()
        a("s_waitcnt vmcnt(17)")
        a("s_barrier")
        issue()
        a("s_mov_b32 s37, 29")
        a.label(f"{name}_lloop{L}")
        a("s_waitcnt vmcnt(17)")
        a("s_barrier")
        issue()
        a("s_sub_u32 s37, s37, 1")
        a("s_cmp_lg_u32 s37, 0")
        a(f"s_cbranch_scc1 {name}_lloop{L}")
        if L == 0:
            a(f"s_branch {name}_ltail")
    a.label(f"{name}_ltail")
    nside = gen_side_loads(a, FR=0, vLane=vLane, vC=vC, vG=vG, vT=LW) if side else 0
    a(f"s_waitcnt vmcnt({17+nside})")
    a("s_barrier")
    a(f"s_waitcnt vmcnt({nside})")
    a("s_barrier")
    a("s_barrier")
    if side:
        gen_side_compute(a, name, FR=0, vSt=vSt, vSt1=vSt1)
    a.label(f"{name}_end")
    a("s_endpgm")
    return NV

def _sKV(FR, t, f): return FR + (t*4+f)*4
def _sPQ(FR, t, j, k): return FR + 80 + (t*4+j*2+k)*4
def _sAC(FR, j, mat): return FR + 160 + (j*2+mat)*4
_sO = 176

def gen_side_loads(a, FR, vLane, vC, vG, vT):
    a("s_lshr_b32 s40, s2, 2")
    a("s_and_b32 s41, s2, 3")
    a("s_and_b32 s42, s41, 1")
    a("s_sub_u32 s43, s29, 4")
    a("s_lshl_b32 s44, s43, 2")
    a("s_add_u32 s44, s44, s42")
    a("s_mul_i32 s45, s41, 36864")
    a(f"s_add_u32 s45, s45, {WS_KVF}")
    a(f"s_mul_i32 s46, s41, {5*PLANE}")
    a("s_lshl_b32 s47, s40, 11")
    a("s_add_u32 s46, s46, s47")
    a(f"s_add_u32 s46, s46, {WS_PQ}")
    a(f"v_lshlrev_b32 v{vT}, 4, v{vLane}")
    a(f"v_lshlrev_b32 v{vT+1}, 6, v{vC}")
    a(f"v_lshl_add_u32 v{vT+1}, v{vG}, 4, v{vT+1}")
    tab = 0
    for b in range(9):
        tab |= PB[b] << (2*b)
    n = 0
    for t in range(5):
        if t == 4:
            a("s_cmp_eq_u32 s42, 0")
            a("s_cselect_b32 s48, 8, 0")
        else:
            a(f"s_add_u32 s48, s44, {t}")
        a("s_lshl_b32 s49, s48, 12")
        a("s_add_u32 s49, s49, s45")
        for f in range(4):
            a(f"buffer_load_dwordx4 {r4(_sKV(FR,t,f))}, v{vT}, s[16:19], s49 offen offset:{f*1024}")
        a("s_lshl_b32 s50, s48, 1")
        a(f"s_lshr_b32 s50, {tab:#x}, s50")
        a("s_and_b32 s50, s50, 3")
        a(f"s_mul_i32 s50, s50, {PLANE}")
        a("s_add_u32 s50, s50, s46")
        for k in range(2):
            for j in range(2):
                a(f"buffer_load_dwordx4 {r4(_sPQ(FR,t,j,k))}, v{vT+1}, s[16:19], s50 offen offset:{j*1024}")
            if k == 0:
                a(f"s_add_u32 s50, s50, {PLANE}")
        n += 8
    return n

def gen_side_compute(a, name, FR, vSt, vSt1):
    a("s_mul_i32 s51, s41, 9")
    a("s_lshr_b32 s51, s51, 1")
    a("s_add_u32 s51, s51, 72")
    a(f"s_mul_i32 s51, s51, {PLANE}")
    a("s_add_u32 s51, s51, s47")
    a(f"s_add_u32 s51, s51, {WS_HO}")
    a("s_lshl_b32 s52, s43, 1")
    a("s_add_u32 s52, s52, s42")
    a(f"s_mul_i32 s52, s52, {PLANE}")
    a("s_add_u32 s52, s52, s51")
    a("s_mov_b32 s53, 0x358637bd")
    for t in range(5):
        if t == 4:
            a("s_cmp_lg_u32 s43, 0")
            a(f"s_cbranch_scc1 {name}_end")
        a(f"s_waitcnt vmcnt({(4-t)*8 + (2 if t in (2,3) else 0) + (4 if t == 4 else 0) - (0)})")
        for j in range(2):
            for mat in range(2):
                A = _sAC(FR, j, mat)
                a(f"v_mfma_f32_16x16x32_bf16 {r4(A)}, {r4(_sKV(FR,t,mat*2))}, {r4(_sPQ(FR,t,j,0))}, 0")
        for j in range(2):
            for mat in range(2):
                A = _sAC(FR, j, mat)
                a(f"v_mfma_f32_16x16x32_bf16 {r4(A)}, {r4(_sKV(FR,t,mat*2+1))}, {r4(_sPQ(FR,t,j,1))}, {r4(A)}")
        a("s_nop 7")
        for j in range(2):
            A = _sAC(FR, j, 0); Dn = _sAC(FR, j, 1)
            P = _sO + j*4 + (t % 2)*2 + (8 if t >= 2 else 0) + (8 if t >= 4 else 0)
            if j == 1:
                pass
            for r in range(4):
                a(f"v_add_f32 v{Dn+r}, s53, v{Dn+r}")
            for r in range(4):
                a(f"v_rcp_f32 v{Dn+r}, v{Dn+r}")
            a("s_nop 0")
            for r in range(4):
                a(f"v_mul_f32 v{A+r}, v{A+r}, v{Dn+r}")
            a(f"v_cvt_pk_bf16_f32 v{P}, v{A}, v{A+1}")
            a(f"v_cvt_pk_bf16_f32 v{P+1}, v{A+2}, v{A+3}")
        if t in (1, 3):
            for j in range(2):
                Q = _sO + j*4 + (8 if t >= 2 else 0)
                swap_pair(a, Q)
                a(f"buffer_store_dwordx4 v[{Q}:{Q+3}], v{vSt}, s[16:19], s52 offen offset:{j*1024}{WT}")
            a(f"s_add_u32 s52, s52, {PLANE}")
        if t == 4:
            a("s_lshl_b32 s54, s42, 5")
            a(f"v_xor_b32 v{vSt1}, s54, v{vSt1}")
            a("s_cmp_eq_u32 s42, 0")
            a(f"s_cselect_b32 s54, {4*PLANE}, 0")
            a("s_add_u32 s54, s54, s51")
            for j in range(2):
                P = _sO + 16 + j*4
                a(f"buffer_store_dwordx2 v[{P}:{P+1}], v{vSt1}, s[16:19], s54 offen offset:{j*1024}{WT}")
```

```python
from asmlib import *
from layout import *
WT = " sc1"

SLOT = 18432
NSLOT = 6
K3_LDS = SLOT * NSLOT + 2048
NST = 45

def gen_k3(a, name="k3_kernel", stamps=False, UNR=5):
    st = Stamps(a, stamps, 2)
    ACC = 0
    FR = 24
    XR = 64
    vA, vWa, vWb = 76, 77, 78
    bA, bWa, bWb = 79, 80, 81
    vT0, vT1, vT2, vT3 = 82, 83, 84, 85
    vLane, vC, vG, vSt = 86, 87, 88, 89
    vA1, vWa1, vWb1 = 90, 91, 92
    NV = 96
    def acc(i, bb): return ACC + (i*2+bb)*4
    def frA(s, i): return FR + s*20 + i*4
    def frW(s, bb): return FR + s*20 + 12 + bb*4
    def r4(x): return f"v[{x}:{x+3}]"
    kernel_header(a, name)
    a("s_cmp_ge_u32 s2, 240")
    a(f"s_cbranch_scc1 {name}_end")
    st.mark(0)
    st.markrt(6)
    a("s_and_b32 s24, s2, 7")
    a("s_lshr_b32 s25, s2, 3")
    a("s_mul_i32 s26, s24, 30")
    a("s_add_u32 s26, s26, s25")
    a("s_cmp_ge_u32 s26, 234")
    a(f"s_cbranch_scc1 {name}_end")
    a("s_load_dwordx2 s[4:5], s[0:1], 0")
    a("s_load_dwordx2 s[6:7], s[0:1], 16")
    a("s_load_dwordx4 s[8:11], s[0:1], 56")
    a("s_load_dwordx2 s[40:41], s[0:1], 80")
    a(f"v_lshrrev_b32 v{vT0}, 6, v0")
    a(f"v_and_b32 v{vLane}, 63, v0")
    a(f"v_readfirstlane_b32 s29, v{vT0}")
    a(f"s_mul_hi_u32 s27, s26, {(2**32 + 8)//9}")
    a("s_mul_i32 s28, s27, 9")
    a("s_sub_u32 s28, s26, s28")
    a("s_mul_i32 s27, s27, 80")
    a("s_mul_i32 s30, s24, 5")
    a(f"v_and_b32 v{vC}, 15, v{vLane}")
    a(f"v_lshrrev_b32 v{vG}, 4, v{vLane}")
    a("s_waitcnt lgkmcnt(0)")
    srd(a, 12, 4, S*D*2)
    srd(a, 16, 40, WS_END)
    srd(a, 20, 10, S*D*2)
    a("s_cmp_ge_u32 s29, 4")
    a(f"s_cbranch_scc1 {name}_loader")
    a("s_and_b32 s31, s29, 1")
    a("s_lshr_b32 s32, s29, 1")
    a("s_mul_i32 s33, s31, 48")
    a("s_add_u32 s33, s33, s27")
    a(f"v_add_u32 v{vT0}, s33, v{vC}")
    a(f"v_mul_u32_u24 v{vT0}, 1152, v{vT0}")
    a("s_lshl_b32 s34, s28, 7")
    a("s_lshl_b32 s35, s32, 6")
    a("s_add_u32 s34, s34, s35")
    a(f"v_lshl_add_u32 v{vSt}, v{vG}, 4, v{vT0}")
    a(f"v_add_u32 v{vSt}, s34, v{vSt}")
    a(f"v_lshl_add_u32 v{vT1}, v{vG}, 3, v{vT0}")
    a(f"v_add_u32 v{vT1}, s34, v{vT1}")
    for i in range(3):
        for bb in range(2):
            x = XR + (i*2+bb)*2
            a(f"buffer_load_dwordx2 v[{x}:{x+1}], v{vT1}, s[12:15], 0 offen offset:{bb*32}")
        if i < 2:
            a(f"v_add_u32 v{vT1}, {16*1152}, v{vT1}")
    a(f"v_lshrrev_b32 v{vT0}, 2, v{vC}")
    a(f"v_sub_u32 v{vT2}, 0, v{vT0}")
    a(f"v_and_b32 v{vT2}, 3, v{vT2}")
    a(f"v_xor_b32 v{vT2}, v{vT2}, v{vG}")
    a(f"v_lshlrev_b32 v{vT2}, 4, v{vT2}")
    a(f"v_lshl_add_u32 v{vT2}, v{vC}, 6, v{vT2}")
    a("s_mul_i32 s33, s31, 3072")
    a(f"v_add_u32 v{bA}, s33, v{vT2}")
    a(f"v_lshl_add_u32 v{vT2}, v{vG}, 3, v{vT0}")
    a(f"v_lshlrev_b32 v{vT2}, 7, v{vT2}")
    a(f"v_bfe_u32 v{vT0}, v{vC}, 1, 1")
    a("s_lshl_b32 s33, s32, 2")
    a(f"v_or_b32 v{vT0}, s33, v{vT0}")
    a(f"v_bfe_u32 v{vT3}, v{vC}, 3, 1")
    a(f"v_lshlrev_b32 v{vT3}, 1, v{vT3}")
    a(f"v_xor_b32 v{vT0}, v{vT0}, v{vT3}")
    a(f"v_and_b32 v{vT3}, 1, v{vG}")
    a(f"v_lshlrev_b32 v{vT3}, 2, v{vT3}")
    a(f"v_xor_b32 v{vT0}, v{vT0}, v{vT3}")
    a(f"v_lshl_add_u32 v{vT2}, v{vT0}, 4, v{vT2}")
    a(f"v_and_b32 v{vT3}, 1, v{vC}")
    a(f"v_lshl_add_u32 v{vT2}, v{vT3}, 3, v{vT2}")
    a(f"v_add_u32 v{bWa}, 10240, v{vT2}")
    a(f"v_xor_b32 v{bWb}, 32, v{bWa}")
    a("s_waitcnt vmcnt(0)")
    for i in range(3):
        for bb in range(2):
            x = XR + (i*2+bb)*2; A = acc(i, bb)
            for h in range(2):
                a(f"v_lshlrev_b32 v{A+2*h}, 16, v{x+h}")
                a(f"v_and_b32 v{A+2*h+1}, 0xffff0000, v{x+h}")
    a("s_mov_b32 s36, 0")
    st.mark(1)
    a("s_barrier")
    st.mark(2)
    def reads(s, ks, rA, rWa, rWb):
        L = []
        for bb, rW in enumerate((rWa, rWb)):
            for h in range(2):
                f = frW(s, bb) + 2*h
                L.append(f"ds_read_b64_tr_b16 v[{f}:{f+1}], v{rW} offset:{ks*4096+h*512}")
        for i in range(3):
            L.append(f"ds_read_b128 {r4(frA(s,i))}, v{rA} offset:{ks*5120+i*1024}")
        return L
    for r in reads(0, 0, bA, bWa, bWb):
        a(r)
    a(f"s_mov_b32 s37, {NST//UNR}")
    a.raw(".p2align 6")
    a.label(f"{name}_loop")
    def half(su, rl):
        idx = 0
        for i in range(3):
            for bb in range(2):
                if bb == 0:
                    a(f"s_waitcnt lgkmcnt({2-i+min(idx+ (1 if idx else 0),7)})")
                a(f"v_mfma_f32_16x16x32_bf16 {r4(acc(i,bb))}, {r4(frW(su,bb))}, {r4(frA(su,i))}, {r4(acc(i,bb))}")
                if idx == 0:
                    a(rl[0]); a(rl[1])
                elif idx + 1 < 7:
                    a(rl[idx+1])
                idx += 1
    for u in range(UNR):
        a(f"v_add_u32 v{vA1}, s36, v{bA}")
        a(f"v_add_u32 v{vWa1}, s36, v{bWa}")
        a(f"v_add_u32 v{vWb1}, s36, v{bWb}")
        a(f"s_add_u32 s36, s36, {SLOT}")
        a(f"s_cmp_ge_u32 s36, {SLOT*NSLOT}")
        a("s_cselect_b32 s36, 0, s36")
        a(f"v_add_u32 v{vA}, s36, v{bA}")
        a(f"v_add_u32 v{vWa}, s36, v{bWa}")
        a(f"v_add_u32 v{vWb}, s36, v{bWb}")
        half(0, reads(1, 1, vA1, vWa1, vWb1))
        a("s_barrier")
        half(1, reads(0, 0, vA, vWa, vWb))
    a("s_sub_u32 s37, s37, 1")
    a("s_cmp_lg_u32 s37, 0")
    a(f"s_cbranch_scc1 {name}_loop")
    st.mark(3)
    a("s_waitcnt lgkmcnt(0)")
    a("s_nop 7")
    for i in range(3):
        if i == 2:
            a("s_cmp_eq_u32 s31, 1")
            a(f"s_cbranch_scc1 {name}_fin")
        Q = XR + i*4
        for bb in range(2):
            A = acc(i, bb)
            a(f"v_cvt_pk_bf16_f32 v{Q+2*bb}, v{A}, v{A+1}")
            a(f"v_cvt_pk_bf16_f32 v{Q+2*bb+1}, v{A+2}, v{A+3}")
        a("s_nop 1")
        a(f"v_permlane32_swap_b32 v{Q}, v{Q+2}")
        a(f"v_permlane32_swap_b32 v{Q+1}, v{Q+3}")
        a("s_nop 1")
        a(f"v_permlane16_swap_b32 v{Q}, v{Q+2}")
        a(f"v_permlane16_swap_b32 v{Q+1}, v{Q+3}")
        a("s_nop 1")
        a(f"buffer_store_dwordx4 v[{Q}:{Q+3}], v{vSt}, s[20:23], 0 offen{WT}")
        if i < 2:
            a(f"v_add_u32 v{vSt}, {16*1152}, v{vSt}")
    a.label(f"{name}_fin")
    st.mark(4)
    if stamps:
        a("s_waitcnt vmcnt(0)")
    st.mark(5)
    st.markrt(7)
    st.dump(8, 29, vT0, vT1)
    a("s_endpgm")
    a.label(f"{name}_loader")
    a("s_sub_u32 s31, s29, 4")
    a(f"v_lshrrev_b32 v{vT0}, 3, v{vLane}")
    a(f"v_mul_u32_u24 v{vT0}, 1152, v{vT0}")
    a(f"v_bfe_u32 v{vT1}, v{vLane}, 4, 1")
    a(f"v_lshlrev_b32 v{vT1}, 1, v{vT1}")
    a(f"v_and_b32 v{vT2}, 7, v{vLane}")
    a(f"v_xor_b32 v{vT1}, v{vT1}, v{vT2}")
    a(f"v_lshlrev_b32 v{vT1}, 4, v{vT1}")
    a(f"v_xor_b32 v{vT2}, 64, v{vT1}")
    a("s_lshl_b32 s32, s28, 7")
    a(f"s_mul_i32 s33, s31, {32*1152}")
    a("s_add_u32 s32, s32, s33")
    a(f"v_add_u32 v{vT0}, s32, v{vT0}")
    for p in range(4):
        a(f"v_add_u32 v{1+p}, v{vT0}, v{vT1 + (p&1)}")
        if p:
            a(f"v_add_u32 v{1+p}, {p*(8*1152-1024)}, v{1+p}")
    a(f"v_lshlrev_b32 v5, 4, v{vLane}")
    a("s_lshl_b32 s32, s27, 6")
    a(f"s_mul_i32 s33, s31, {PLANE}")
    a("s_add_u32 s32, s32, s33")
    a(f"s_add_u32 s32, s32, {WS_HO}")
    a("s_mul_i32 s38, s31, 5120")
    a("s_lshl_b32 s39, s31, 12")
    a("s_add_u32 s39, s39, 10240")
    a("s_and_b32 s9, s9, 0xffff")
    a("s_and_b32 s7, s7, 0xffff")
    a("s_mov_b32 s47, 0x00020000")
    a(f"s_mov_b32 s42, {FH*D*2}")
    a(f"s_mov_b32 s43, {D*D*2}")
    a("s_mov_b32 s36, 0")
    def issue():
        a(f"s_mul_i32 s33, s30, {2*PLANE}")
        a("s_add_u32 s33, s33, s32")
        a("s_add_u32 m0, s36, s38")
        a("s_cmp_lt_u32 s30, 36")
        a("s_cselect_b32 s44, s8, s6")
        a("s_cselect_b32 s45, s9, s7")
        a(f"s_cselect_b32 s46, s42, s43")
        a("s_cselect_b32 s34, 0, 36")
        for p in range(4):
            a(f"buffer_load_dwordx4 v5, s[16:19], s33 offen offset:{p*1024} lds")
        a("s_add_u32 m0, m0, 4096")
        a("s_add_u32 s33, s33, 4096")
        a("s_sub_u32 s34, s30, s34")
        a(f"buffer_load_dwordx4 v5, s[16:19], s33 offen lds")
        a("s_add_u32 m0, s36, s39")
        a(f"s_mul_i32 s34, s34, {64*1152}")
        for p in range(4):
            a(f"buffer_load_dwordx4 v{1+p}, s[44:47], s34 offen offset:{p*1024} lds")
        a("s_add_u32 s30, s30, 1")
        a(f"s_cmp_ge_u32 s30, {NST}")
        a("s_cselect_b32 s30, 0, s30")
        a(f"s_add_u32 s36, s36, {SLOT}")
        a(f"s_cmp_ge_u32 s36, {SLOT*NSLOT}")
        a("s_cselect_b32 s36, 0, s36")
    PRE = NSLOT - 1
    issue()
    issue()
    a(f"s_waitcnt vmcnt(9)")
    a("s_barrier")
    for _ in range(PRE - 2):
        issue()
    a(f"s_mov_b32 s37, {NST-PRE}")
    a.label(f"{name}_lloop")
    a(f"s_waitcnt vmcnt({9*(PRE-2)})")
    a("s_barrier")
    issue()
    a("s_sub_u32 s37, s37, 1")
    a("s_cmp_lg_u32 s37, 0")
    a(f"s_cbranch_scc1 {name}_lloop")
    for r in range(PRE):
        a(f"s_waitcnt vmcnt({9*max(PRE-2-r,0)})")
        a("s_barrier")
    a("s_endpgm")
    a.label(f"{name}_end")
    a("s_endpgm")
    return NV
```

```python
S, D, F, FH, H, DH = 2048, 576, 4608, 2304, 32, 18
KO = FH + D
PLANE = S * 64
WS_Z2T = 0
WS_Z1  = WS_Z2T + 16*32*144*128
WS_HO  = WS_Z1 + 256*4*9*1024
WS_PQ  = WS_HO + 90*PLANE + 8192
WS_ST  = WS_PQ + 20*PLANE
WS_KFL = WS_ST + 256*4*512
WS_KVP = WS_KFL + 64*256
WS_KVF = WS_KVP + 4*16*36864
WS_XN  = WS_KVF + 4*36*1024
WS_TAG = WS_XN + 2*S*D*2
WS_END = WS_TAG + 256
PB = [0, 0, 0, 1, 1, 2, 2, 3, 3]
def w0_of(b):
    return 32 * PB[b]

_c1 = 2*0.7978845608028654*1.4426950408889634
GK = (_c1*0.044715) ** (1.0/3.0)
GKAPPA = GK*GK/0.044715
```

```python
import build
build.build(["k1","k2","k3"], "h_a.s", k1=dict(wt=""))
build.build(["k1","k2","k3"], "h_b.s", k1=dict(wt="", prefetch=False))
build.build(["k1","k2","k3"], "h_c.s", k1=dict(wt=" sc1", prefetch=True))
build.build(["k1","k2","k3"], "h_d.s", k1=dict(wt="", prefetch=False, wpf=False))
```

```python
import struct
from asmlib import *
from layout import *
from k2 import swap_pair, r4

WSLOT = 20480
NRING = 4
PARK0 = WSLOT * NRING
PARK1 = PARK0 + 36864
LFLAG = PARK1 + 36864
LSTAT = LFLAG + 64
LJUNK = LSTAT + 2048
K1_LDS = LJUNK + 4096
DLOOK = 6
OOB = 0x7f000000

XA = 0
ACC = 144
RING = 216
JUNK = RING + 24
VD = 244
vRd = 249
vRdB = 250
vL16 = 251
vT = 252
NV = 256
XJ = 252
def xa(j, ks): return XA + (ks*2+j)*4
def acc(j, b): return ACC + (b*2+j)*4
def f2h(x): return hex(struct.unpack("<I", struct.pack("<f", x))[0])
def pr(x): return f"v[{x}:{x+1}]"

sM, sCG, sRole, sW8, sW4, sG = 20, 21, 22, 23, 24, 25
sStep = 26
sCol = [27, 28, 29]
sDoff, sDslot, sRslot = 30, 31, 32
sT0, sT1, sT2, sT3, sT4 = 33, 34, 35, 36, 37
sColNext = 38
sPf = 39
sN = 40
sPark = 41
sWm0 = 43
sGC = 46
sL2E = 48
sRet = 50
sNt = [52, 53, 54]
sSpin = 55
sOnes = 42
sZ1 = 44
sFirst = 98
sEarly = 96
sSt = 97
sTagOff = 3
sTag = 84
sPubW = 45
sWp = 82
PFS = 56

def gen_k1(a, name="k1_kernel", stamps=False, wt="", prefetch=False, wpf=True, exp="", pm=2, ps=0, fine=False, pslp=16, fs=6, ep=False, es=8, swapq=True, pf2=True):
    st = Stamps(a, stamps, 0)
    N = name
    def lane_cg(vc, vg, a=a):
        a(f"v_bfe_u32 v{vc}, v{vL16}, 4, 4")
        a(f"v_lshrrev_b32 v{vg}, 8, v{vL16}")
    def dma_groups():
        return [
            [f"s_add_u32 m0, s{sDslot}, s{sWm0}", f"s_add_u32 s{sDslot}, s{sDslot}, {WSLOT}",
             f"buffer_load_dwordx4 v{VD}, s[8:11], s{sDoff} offen lds"],
            [f"buffer_load_dwordx4 v{VD+1}, s[8:11], s{sDoff} offen offset:1024 lds"],
            [f"buffer_load_dwordx4 v{VD+2}, s[8:11], s{sDoff} offen offset:2048 lds"],
            [f"buffer_load_dwordx4 v{VD+3}, s[8:11], s{sDoff} offen offset:3072 lds"],
            ["s_add_u32 m0, m0, 4096", f"s_cmp_ge_u32 s{sDslot}, {WSLOT*NRING}", f"s_cselect_b32 s{sDslot}, 0, s{sDslot}",
             f"buffer_load_dwordx4 v{VD+4}, s[8:11], s{sDoff} offen lds", f"s_add_u32 s{sDoff}, s{sDoff}, s{sStep}"],
        ]
    def dma_issue():
        for g in dma_groups():
            for l in g:
                a(l)
    def pf_group(junk=JUNK):
        return [f"buffer_load_dwordx4 {r4(junk)}, v{vL16}, s[{PFS}:{PFS+3}], s{sPf} offen", f"s_add_u32 s{sPf}, s{sPf}, 4096"]
    class Side:
        def __init__(self, solo, q0=(), last=False):
            self.solo = solo
            self.last = last
            self.q = list(q0)
        def slot(self, sl, body=None, extra=None, lgkm=False, drain=False):
            lines = [l.strip() for l in body.lines] if body is not None else []
            groups = []
            if not self.solo:
                if sl > 0 and not (self.last and sl >= 7):
                    groups = dma_groups()
                    if sl == 7:
                        groups[0] = [f"s_mov_b32 s{sDoff}, s{sColNext}"] + groups[0]
                if extra:
                    groups.append(extra)
            pts = [i for i in range(1, len(lines)) if lines[i].startswith("v_") and lines[i-1].startswith("v_")
                   and "readfirstlane" not in lines[i] and "cndmask" not in lines[i]]
            ins = {}
            if groups:
                ins[0] = list(groups[0])
                rest = groups[1:]
                if len(pts) >= len(rest) and rest:
                    for k, g in enumerate(rest):
                        ins.setdefault(pts[(k+1)*len(pts)//(len(rest)+1)], []).extend(g)
                else:
                    for g in rest:
                        ins[0].extend(g)
            for i, l in enumerate(lines + [None]):
                seq = list(ins.get(i, [])) + ([l] if l is not None else [])
                for x in seq:
                    if x.endswith(":"):
                        a.label(x[:-1])
                    else:
                        a(x)
                    if x.startswith("buffer_") and "store_byte" not in x and ";nc" not in x:
                        self.q.append(f"D{sl+2}" if x.endswith(" lds") else "x")
            if not self.solo:
                need = f"D{sl+1}"
                n = None
                if drain:
                    n = 0
                elif need in self.q:
                    n = len(self.q) - 1 - max(i for i, x in enumerate(self.q) if x == need)
                w = []
                if n is not None:
                    w.append(f"vmcnt({min(n, 63)})")
                if lgkm:
                    w.append("lgkmcnt(0)")
                if w:
                    a("s_waitcnt " + " ".join(w))
                a("s_barrier")
        def finish(self, pad=True):
            if not self.solo:
                dma_issue()
                if pad:
                    a(f"s_mov_b32 s{sT0}, {OOB}")
                    a(f"buffer_load_dword v{vT}, v{vL16}, s[12:15], s{sT0} offen")
    def set_flag(a):
        L = f"{N}_nf{set_flag.n}"; set_flag.n += 1
        a(f"s_cmp_lg_u32 s{sW4}, 0")
        a(f"s_cbranch_scc1 {L}")
        a(f"s_lshl_b32 s{sT0}, s{sM}, 4")
        a(f"s_lshl_b32 s{sT1}, s{sCG}, 2")
        a(f"s_add_u32 s{sT0}, s{sT0}, s{sT1}")
        a(f"s_add_u32 s{sT0}, s{sT0}, s{sRole}")
        a(f"v_mov_b32 v{JUNK}, 1")
        a("s_nop 0")
        a(f"v_mov_b32 v{JUNK+1}, 0")
        a(f"buffer_store_byte v{JUNK}, v{JUNK+1}, s[16:19], s{sT0} offen sc1")
        a.label(L)
    set_flag.n = 0
    def call(lbl):
        a(f"s_call_b64 s[{sRet}:{sRet+1}], {N}_{lbl}")
    def ret():
        a(f"s_setpc_b64 s[{sRet}:{sRet+1}]")
    def poll_stats(tag, slp):
        TMP = RING
        a(f"v_mov_b32 v{vT+3}, {LFLAG}")
        a(f"s_mov_b32 s{sSpin}, 0")
        a(f"ds_read_b32 v{TMP}, v{vT+3}")
        a("s_waitcnt lgkmcnt(0)")
        a(f"v_readfirstlane_b32 s{sT1}, v{TMP}")
        a(f"s_cmp_lg_u32 s{sT1}, 1")
        a(f"s_cbranch_scc1 {N}_{tag}slow")
        a.label(f"{N}_{tag}go")
        b = Asm()
        pend.append(b)
        a_main, a2 = a, b
        a2.label(f"{N}_{tag}slow")
        slow(a2, tag, slp)
    pend = []
    def slow(a, tag, slp):
        TMP = RING
        a(f"s_cmp_lg_u32 s{sW8}, 4")
        a(f"s_cbranch_scc1 {N}_{tag}wait")
        a(f"s_lshl_b32 s{sT0}, s{sM}, 4")
        a(f"v_mov_b32 v{vT+2}, 0")
        a.label(f"{N}_{tag}poll")
        a(f"buffer_load_dwordx4 {r4(TMP)}, v{vT+2}, s[16:19], s{sT0} offen sc1")
        a(f"s_add_u32 s{sSpin}, s{sSpin}, 1")
        a("s_waitcnt vmcnt(0)")
        a(f"v_and_b32 v{TMP}, v{TMP}, v{TMP+1}")
        a(f"v_and_b32 v{TMP+2}, v{TMP+2}, v{TMP+3}")
        a(f"v_and_b32 v{TMP}, v{TMP}, v{TMP+2}")
        a("s_nop 0")
        a(f"v_readfirstlane_b32 s{sT1}, v{TMP}")
        a(f"s_and_b32 s{sT1}, s{sT1}, 0x01010100")
        a(f"s_cmp_eq_u32 s{sT1}, 0x01010100")
        a(f"s_cbranch_scc1 {N}_{tag}seen")
        a(f"s_sleep {slp}")
        a(f"s_cmp_lt_u32 s{sSpin}, 0x20000")
        a(f"s_cbranch_scc1 {N}_{tag}poll")
        a.label(f"{N}_{tag}seen")
        a(f"v_mov_b32 v{TMP}, 1")
        a(f"ds_write_b32 v{vT+3}, v{TMP}")
        a(f"s_branch {N}_{tag}go")
        a.label(f"{N}_{tag}wait")
        a(f"ds_read_b32 v{TMP}, v{vT+3}")
        a(f"s_add_u32 s{sSpin}, s{sSpin}, 1")
        a("s_waitcnt lgkmcnt(0)")
        a(f"v_readfirstlane_b32 s{sT1}, v{TMP}")
        a(f"s_cmp_eq_u32 s{sT1}, 1")
        a(f"s_cbranch_scc1 {N}_{tag}go")
        a("s_sleep 4")
        a(f"s_cmp_lt_u32 s{sSpin}, 0x400000")
        a(f"s_cbranch_scc1 {N}_{tag}wait")
        a(f"s_branch {N}_{tag}go")
    def get_tag(a=a):
        a(f"v_mov_b32 v{vT+3}, {LFLAG}")
        a(f"ds_read_b32 v{vT+3}, v{vT+3}")
        a("s_waitcnt lgkmcnt(0)")
        a(f"v_readfirstlane_b32 s{sTag}, v{vT+3}")
        a(f"s_mul_i32 s{sTag+1}, s{sTag}, 0x9e3779b1")
        a(f"s_xor_b32 s{sTag+1}, s{sTag+1}, 0x5bd1e995")
    GR = XA + 64
    def stat_loads(a):
        a(f"v_lshrrev_b32 v{GR+32}, 9, v{vL16}")
        a(f"v_lshlrev_b32 v{GR+32}, 11, v{GR+32}")
        a(f"v_and_b32 v{GR+33}, 0x1f0, v{vL16}")
        a(f"v_add_u32 v{GR+32}, v{GR+32}, v{GR+33}")
        a(f"s_lshl_b32 s{sSt}, s{sM}, 15")
        a(f"s_lshl_b32 s{sT3}, s{sW4}, 9")
        a(f"s_add_u32 s{sSt}, s{sSt}, s{sT3}")
        a(f"s_add_u32 s{sSt}, s{sSt}, {WS_ST}")
        a(f"s_mov_b32 s{sT3}, s{sSt}")
        for q in range(8):
            a(f"buffer_load_dwordx4 {r4(GR+4*q)}, v{GR+32}, s[12:15], s{sT3} offen sc1")
            if q < 7:
                a(f"s_add_u32 s{sT3}, s{sT3}, 4096")
    def xreduce(a, R, n):
        for sw in ("v_permlane32_swap_b32", "v_permlane16_swap_b32"):
            for i in range(n):
                a(f"v_mov_b32 v{R+n+i}, v{R+i}")
            a("s_nop 1")
            for i in range(n):
                a(f"{sw} v{R+i}, v{R+n+i}")
            a("s_nop 1")
            for i in range(n):
                a(f"v_add_f32 v{R+i}, v{R+i}, v{R+n+i}")

    kernel_header(a, name)
    a("s_cmp_ge_u32 s2, 256")
    a(f"s_cbranch_scc1 {N}_end")
    st.mark(0)
    st.markrt(8)
    KP = 84
    a(f"s_load_dwordx4 s[{KP}:{KP+3}], s[0:1], 0")
    a(f"s_load_dwordx4 s[{KP+4}:{KP+7}], s[0:1], 32")
    a(f"s_load_dwordx4 s[{KP+8}:{KP+11}], s[0:1], 72")
    a(f"s_load_dwordx2 s[60:61], s[0:1], 56")
    a(f"s_load_dwordx2 s[62:63], s[0:1], 16")
    a(f"v_lshrrev_b32 v{vT}, 6, v0")
    a(f"v_and_b32 v{vT+3}, 63, v0")
    a(f"v_readfirstlane_b32 s{sW8}, v{vT}")
    a(f"v_lshlrev_b32 v{vL16}, 4, v{vT+3}")
    a(f"s_and_b32 s{sT0}, s2, 7")
    a(f"s_lshr_b32 s{sT1}, s2, 3")
    a(f"s_and_b32 s{sM}, s{sT0}, 1")
    a(f"s_lshl_b32 s{sM}, s{sM}, 3")
    a(f"s_and_b32 s{sT2}, s{sT1}, 7")
    a(f"s_add_u32 s{sM}, s{sM}, s{sT2}")
    a(f"s_lshr_b32 s{sCG}, s{sT0}, 1")
    a(f"s_lshr_b32 s{sRole}, s{sT1}, 3")
    if swapq:
        a(f"s_lshr_b32 s{sT2}, s{sRole}, 1")
        a(f"s_xor_b32 s{sT2}, s{sT2}, 1")
        a(f"s_xor_b32 s{sRole}, s{sRole}, s{sT2}")
    a(f"s_and_b32 s{sW4}, s{sW8}, 3")
    a(f"s_lshr_b32 s{sG}, s{sW8}, 2")
    a(f"s_mul_i32 s{sWm0}, s{sW4}, 5120")
    a(f"s_mov_b32 s{sGC}, {f2h(-GKAPPA)}")
    a(f"s_cmp_eq_u32 s{sRole}, 0")
    a(f"s_cselect_b32 s{sGC+1}, 1.0, {f2h(GK)}")
    a(f"s_mov_b32 s{sL2E}, 0x3fb8aa3b")
    a(f"s_mov_b32 s{sL2E+1}, 0x358637bd")
    a(f"s_mov_b32 s{sOnes}, 0x3f803f80")
    a(f"s_mov_b32 s{sPubW}, 0")
    a(f"s_xor_b32 s{sFirst}, s{sG}, 1")
    a(f"s_mov_b32 s{sEarly}, 0")
    a(f"v_lshrrev_b32 v{vT}, 3, v{vT+3}")
    a(f"v_and_b32 v{vT+1}, 7, v{vT+3}")
    a(f"v_xor_b32 v{vT+1}, v{vT+1}, v{vT}")
    a(f"v_lshlrev_b32 v{vT+1}, 4, v{vT+1}")
    a(f"s_lshl_b32 s{sT2}, s{sM}, 7")
    a(f"v_add_u32 v{vT}, s{sT2}, v{vT}")
    a(f"v_mul_u32_u24 v{vT}, 1152, v{vT}")
    a(f"v_add_u32 v{vT}, v{vT}, v{vT+1}")
    a(f"s_lshl_b32 s{sT2}, s{sCG}, 2")
    a(f"s_add_u32 s{sT2}, s{sT2}, s{sRole}")
    a(f"s_mul_i32 s{sT2}, s{sT2}, 9")
    a(f"s_add_u32 s{sT2}, s{sT2}, s{sW8}")
    a("s_waitcnt lgkmcnt(0)")
    srd(a, 4, KP, S*D*2)
    for q in range(18):
        a(f"s_cmp_ge_u32 s{sT2}, 144")
        a(f"s_cselect_b32 s{sT3}, 144, 0")
        a(f"s_sub_u32 s{sT2}, s{sT2}, s{sT3}")
        a(f"s_mul_hi_u32 s{sT3}, s{sT2}, {(2**32+8)//9}")
        a(f"s_lshl_b32 m0, s{sT2}, 10")
        a(f"s_mul_i32 s{sT4}, s{sT3}, {9216-9*128}")
        a(f"s_lshl_b32 s{sT3}, s{sT2}, 7")
        a(f"s_add_u32 s{sT3}, s{sT3}, s{sT4}")
        a(f"buffer_load_dwordx4 v{vT}, s[4:7], s{sT3} offen lds")
        a(f"s_add_u32 s{sT2}, s{sT2}, 8")
    srd(a, 12, KP+10, WS_END)
    srd(a, 16, KP+8, 256)
    srd(a, PFS, KP+6, S*S*2)
    a(f"s_add_u32 s{sT0}, s{sCG}, 16")
    a(f"s_cmp_eq_u32 s{sRole}, 0")
    a(f"s_cselect_b32 s{sTagOff}, s{sT0}, s{sM}")
    a(f"s_cselect_b32 s{sT0}, s{sM}, s{sCG}")
    a(f"s_lshl_b32 s{sTagOff}, s{sTagOff}, 2")
    a(f"s_lshr_b32 s{sT1}, s{sRole}, 1")
    a(f"s_or_b32 s{sT0}, s{sT0}, s{sT1}")
    a(f"s_or_b32 s{sT0}, s{sT0}, s{sW8}")
    a(f"s_cmp_eq_u32 s{sT0}, 0")
    a(f"s_cbranch_scc1 {N}_nonce")
    a.label(f"{N}_nonceback")
    a(f"s_mov_b32 s{sT3}, {D*F*2+4096}")
    a(f"s_movk_i32 s{sT2}, 9216")
    a(f"s_cmp_eq_u32 s{sRole}, 0")
    a(f"s_cselect_b32 s8, s{KP+2}, s{KP+4}")
    a(f"s_cselect_b32 s9, s{KP+3}, s{KP+5}")
    a(f"s_cselect_b32 s10, {D*3*D*2+4096}, s{sT3}")
    a(f"s_cselect_b32 s{sT4}, 3456, s{sT2}")
    a(f"s_and_b32 s9, s9, 0xffff")
    a("s_sub_u32 s8, s8, 4096")
    a("s_subb_u32 s9, s9, 0")
    a("s_mov_b32 s11, 0x00020000")
    a(f"s_lshl_b32 s{sStep}, s{sT4}, 6")
    a(f"s_mul_i32 s{sT0}, s{sCG}, 288")
    a(f"s_lshl_b32 s{sT1}, s{sCG}, 2")
    a(f"s_cmp_eq_u32 s{sRole}, 0")
    a(f"s_cbranch_scc0 {N}_rz")
    a(f"s_add_u32 s{sCol[0]}, s{sT0}, 1152")
    a(f"s_add_u32 s{sCol[1]}, s{sT0}, 2304")
    a(f"s_mov_b32 s{sCol[2]}, s{sT0}")
    for i in range(3):
        a(f"s_mov_b32 s{sNt[i]}, s{sCG}")
    a(f"s_branch {N}_rdone")
    a.label(f"{N}_rz")
    a(f"s_cmp_eq_u32 s{sRole}, 1")
    a(f"s_cbranch_scc0 {N}_rc")
    a(f"s_mov_b32 s{sNt[0]}, s{sT1}")
    a(f"s_add_u32 s{sNt[1]}, s{sT1}, 1")
    a(f"s_mov_b32 s{sNt[2]}, 0")
    a(f"s_mul_i32 s{sCol[0]}, s{sNt[0]}, 288")
    a(f"s_add_u32 s{sCol[0]}, s{sCol[0]}, 4608")
    a(f"s_add_u32 s{sCol[1]}, s{sCol[0]}, 288")
    a(f"s_mov_b32 s{sCol[2]}, {OOB}")
    a(f"s_branch {N}_rdone")
    a.label(f"{N}_rc")
    a(f"s_add_u32 s{sNt[0]}, s{sT1}, s{sRole}")
    a(f"s_sub_u32 s{sT2}, s{sRole}, 2")
    a(f"s_lshl_b32 s{sT2}, s{sT2}, 1")
    a(f"s_add_u32 s{sNt[1]}, s{sT1}, s{sT2}")
    a(f"s_add_u32 s{sNt[2]}, s{sNt[1]}, 1")
    a(f"s_mul_i32 s{sCol[0]}, s{sNt[0]}, 288")
    a(f"s_add_u32 s{sCol[0]}, s{sCol[0]}, 4608")
    a(f"s_mul_i32 s{sCol[1]}, s{sNt[1]}, 288")
    a(f"s_add_u32 s{sCol[2]}, s{sCol[1]}, 288")
    a.label(f"{N}_rdone")
    t0, t1, t2, t3 = RING, RING+1, RING+2, RING+3
    a(f"s_mul_i32 s{sT0}, s{sW4}, 320")
    a(f"v_mov_b32 v{t3}, {OOB}")
    for p in range(5):
        a(f"v_add_u32 v{t0}, s{sT0}, v{vT+3}")
        if p:
            a(f"v_add_u32 v{t0}, {64*p}, v{t0}")
        a(f"v_mul_u32_u24 v{t1}, 3277, v{t0}")
        a(f"v_lshrrev_b32 v{t1}, 16, v{t1}")
        a(f"v_mul_u32_u24 v{t2}, 20, v{t1}")
        a(f"v_sub_u32 v{t0}, v{t0}, v{t2}")
        a(f"v_bfe_u32 v{t2}, v{t1}, 3, 1")
        a(f"v_lshlrev_b32 v{t2}, 1, v{t2}")
        a(f"v_sub_u32 v{t0}, v{t0}, v{t2}")
        a(f"v_cmp_gt_u32 vcc, 18, v{t0}")
        a(f"v_mul_lo_u32 v{t1}, v{t1}, s{sT4}")
        a(f"v_lshl_add_u32 v{t1}, v{t0}, 4, v{t1}")
        a(f"v_add_u32 v{t1}, {4096 - (p % 4)*1024}, v{t1}")
        a(f"v_cndmask_b32 v{VD+p}, v{t3}, v{t1}, vcc")
    a(f"s_mul_i32 s{sDoff}, s{sG}, s{sStep}")
    a(f"s_add_u32 s{sDoff}, s{sDoff}, s{sCol[0]}")
    a(f"s_and_b32 s{sT0}, s{sM}, 7")
    a(f"s_mul_i32 s{sT1}, s{sT0}, s{sStep}")
    a(f"s_add_u32 s{sT2}, s{sCol[0]}, s{sT1}")
    a(f"s_add_u32 s{sWp+1}, s{sCol[1]}, s{sT1}")
    a(f"s_add_u32 s{sPf}, s{sCol[2]}, s{sT1}")
    a(f"s_mov_b32 s{sT3}, {OOB}")
    for t in range(3):
        a(f"s_cmp_eq_u32 s{sT0}, {t}")
        a(f"s_cselect_b32 s{sT3}, s{sCol[t]}, s{sT3}")
    a(f"s_lshl_b32 s{sT1}, s{sStep}, 3")
    a(f"s_add_u32 s{sT3}, s{sT3}, s{sT1}")
    a(f"s_cmp_eq_u32 s{sG}, 0")
    a(f"s_cselect_b32 s{sWp}, s{sT2}, s{sT3}")
    lane_cg(t0, t1)
    a(f"v_lshrrev_b32 v{t2}, 2, v{t0}")
    a(f"v_lshl_add_u32 v{t2}, v{t1}, 3, v{t2}")
    a(f"v_mul_u32_u24 v{t2}, 320, v{t2}")
    a(f"v_and_b32 v{t3}, 1, v{t1}")
    a(f"v_lshl_add_u32 v{t2}, v{t3}, 5, v{t2}")
    a(f"v_and_b32 v{t3}, 3, v{t0}")
    a(f"v_lshl_add_u32 v{vRdB}, v{t3}, 3, v{t2}")
    a(f"v_lshrrev_b32 v{t2}, 3, v{t0}")
    a(f"v_mul_u32_u24 v{t2}, 9216, v{t2}")
    a(f"v_and_b32 v{t3}, 7, v{t0}")
    a(f"v_lshl_add_u32 v{t2}, v{t3}, 7, v{t2}")
    a(f"v_xor_b32 v{t3}, v{t3}, v{t1}")
    a(f"v_lshl_add_u32 v{t2}, v{t3}, 4, v{t2}")
    a(f"s_mul_i32 s{sT0}, s{sW4}, 36864")
    a(f"v_add_u32 v{t2}, s{sT0}, v{t2}")
    a(f"v_xor_b32 v{t3}, 64, v{t2}")
    a(f"v_mov_b32 v{vT+1}, {LFLAG}")
    a(f"v_mov_b32 v{vT+2}, 0")
    a(f"v_mov_b32 v{vT+3}, 0")
    a(f"ds_write_b64 v{vT+1}, {pr(vT+2)}")
    a(f"s_waitcnt vmcnt(0) lgkmcnt(0)")
    a("s_barrier")
    st.mark(1)
    a(f"s_cmp_eq_u32 s{sG}, 1")
    a(f"s_cbranch_scc1 {N}_g1")
    SS = ACC + 24
    LNP = ACC + 32
    NT = RING + 8
    def ln_phase(j):
        for ks in range(18):
            a(f"ds_read_b128 {r4(xa(j,ks))}, v{t2 + (ks&1)} offset:{j*18432 + (ks>>1)*1024}")
            if ks == 11:
                a("s_waitcnt lgkmcnt(6)")
        extra = [f"buffer_load_dwordx4 {r4(ACC+4*p)}, v{VD+p}, s[8:11], s{sDoff} offen offset:{(p%4)*1024}" for p in range(5)]
        late = []
        if wpf:
            for sreg in ((sWp, sPf) if j == 0 else (sWp+1, sWp)):
                late += [f"buffer_load_dwordx4 v{VD+p}, s[8:11], s{sreg} offen offset:{(p%4)*1024} lds" for p in range(5)]
            a(f"s_mov_b32 m0, {LJUNK}")
        if j == 0:
            a(f"v_mov_b32 v{vT+1}, 0")
            late.append(f"buffer_load_dword v{vT}, v{vT+1}, s[16:19], s{sTagOff} offen sc1")
        nwp = len(late)
        for i in range(4):
            a(f"v_mov_b32 v{SS+i}, 0")
        for ks in range(18):
            if extra:
                a(extra.pop(0))
            elif late and ks % 4 == 1:
                a(late.pop(0))
            if ks in (0, 6, 12):
                a(f"s_waitcnt lgkmcnt({12 if ks == 0 else 6 if ks == 6 else 0})")
            for r in range(4):
                x = xa(j, ks) + r
                o = 2 if (r & 1) else 0
                a(f"v_dot2c_f32_bf16 v{SS+o}, s{sOnes}, v{x}")
                a(f"v_dot2c_f32_bf16 v{SS+o+1}, v{x}, v{x}")
        a("s_nop 3")
        for i in range(2):
            a(f"v_add_f32 v{SS+i}, v{SS+i}, v{SS+2+i}")
        xreduce(a, SS, 2)
        inv = f2h(1.0/576)
        a(f"v_mul_f32 v{SS}, {inv}, v{SS}")
        a(f"v_mul_f32 v{SS+1}, {inv}, v{SS+1}")
        a(f"v_fma_f32 v{SS+1}, -v{SS}, v{SS}, v{SS+1}")
        a(f"v_max_f32 v{SS+1}, 0, v{SS+1}")
        a(f"v_add_f32 v{SS+1}, 0x3727c5ac, v{SS+1}")
        a(f"v_rsq_f32 v{LNP}, v{SS+1}")
        a("s_nop 0")
        a(f"v_mul_f32 v{LNP}, s{sGC+1}, v{LNP}")
        a(f"v_mul_f32 v{LNP+1}, v{SS}, v{LNP}")
        a(f"v_sub_f32 v{LNP+1}, 0, v{LNP+1}")
        for ks in range(18):
            x = xa(j, ks)
            for r in range(4):
                a(f"v_lshlrev_b32 v{NT+2*r}, 16, v{x+r}")
                a(f"v_and_b32 v{NT+2*r+1}, 0xffff0000, v{x+r}")
            for r in range(4):
                a(f"v_pk_fma_f32 {pr(NT+2*r)}, {pr(NT+2*r)}, {pr(LNP)}, {pr(LNP)} op_sel:[0,0,1] op_sel_hi:[1,0,1]")
            for r in range(4):
                a(f"v_cvt_pk_bf16_f32 v{x+r}, v{NT+2*r}, v{NT+2*r+1}")
            a(f"ds_write_b128 v{t2 + (ks&1)}, {r4(x)} offset:{j*18432 + (ks>>1)*1024}")
            if late and ks % 2 == 0:
                a(late.pop(0))
        a("s_waitcnt lgkmcnt(0)")
        a("s_barrier")
        for ks in range(18):
            a(f"ds_read_b128 {r4(xa(1-j,ks))}, v{t2 + (ks&1)} offset:{(1-j)*18432 + (ks>>1)*1024}")
            if ks == 11:
                a("s_waitcnt lgkmcnt(4)")
        a(f"s_add_u32 s{sT0}, s{sWm0}, {j*WSLOT}")
        a(f"v_add_u32 v{vRd}, s{sT0}, v{vL16}")
        a(f"s_waitcnt vmcnt({nwp}) lgkmcnt(0)")
        a("s_barrier")
        for p in range(5):
            a(f"ds_write_b128 v{vRd}, {r4(ACC+4*p)} offset:{p*1024}")
    ln_phase(0)
    a(f"s_setprio {pm}")
    st.mark(2)
    a("s_waitcnt lgkmcnt(0)")
    a("s_barrier")
    a(f"s_mov_b32 s{sRslot}, 0")
    a(f"s_cmp_eq_u32 s{sRole}, 0")
    a(f"s_cbranch_scc1 {N}_g0a")
    call("main1")
    a(f"s_branch {N}_g0b")
    a.label(f"{N}_g0a")
    call("main0")
    a.label(f"{N}_g0b")
    a(f"s_mov_b32 s{sFirst}, 0")
    st.mark(3)
    a(f"s_cmp_eq_u32 s{sW4}, 1")
    a(f"s_cbranch_scc1 {N}_nonce2")
    a.label(f"{N}_nonce2back")
    a(f"s_setprio {ps}")
    a(f"s_mov_b32 s{sDslot}, 0")
    a(f"s_mul_i32 s{sDoff}, s{sStep}, 3")
    a(f"s_add_u32 s{sDoff}, s{sDoff}, s{sCol[1]}")
    a(f"s_mov_b32 s{sColNext}, s{sCol[2]}")
    a(f"s_mov_b32 s{sN}, s{sNt[0]}")
    a(f"s_mov_b32 s{sPark}, {PARK0}")
    srd(a, PFS, 60, FH*D*2)
    a(f"s_mul_i32 s{sPf}, s2, 12288")
    a(f"s_lshl_b32 s{sT0}, s{sW4}, 10")
    a(f"s_add_u32 s{sPf}, s{sPf}, s{sT0}")
    a(f"s_cmp_eq_u32 s{sRole}, 0")
    a(f"s_cbranch_scc1 {N}_g0q")
    call("epi_z2_side")
    st.mark(4)
    a(f"s_cmp_eq_u32 s{sRole}, 1")
    a(f"s_cbranch_scc0 {N}_g0t2")
    call("final")
    a(f"s_branch {N}_done")
    a.label(f"{N}_g0q")
    call("epi_k_side")
    get_tag()
    st.mark(4)
    a.label(f"{N}_g0t2")
    a(f"s_setprio {pm}")
    a(f"s_mov_b32 s{sRslot}, {2*WSLOT}")
    a(f"s_or_b32 s{sT0}, s{sW4}, s{sRole}")
    a(f"s_cmp_eq_u32 s{sT0}, 0")
    a(f"s_cselect_b32 s{sPubW}, 1, 0")
    call("main1")
    st.mark(5)
    a(f"s_mov_b32 s{sN}, s{sNt[2]}")
    a(f"s_cmp_eq_u32 s{sRole}, 0")
    a(f"s_cbranch_scc1 {N}_g0q2")
    call("epi_z1_solo")
    a(f"s_branch {N}_done")
    a.label(f"{N}_g0q2")
    call("epi_q")
    a(f"s_branch {N}_done")
    a.label(f"{N}_g1")
    ln_phase(1)
    a(f"s_mov_b32 s{sDslot}, {2*WSLOT}")
    a(f"s_add_u32 s{sDoff}, s{sDoff}, s{sStep}")
    a(f"s_mov_b32 s{sColNext}, s{sCol[1]}")
    dma_issue()
    st.mark(2)
    a("s_waitcnt lgkmcnt(0)")
    a("s_barrier")
    sd = Side(False, ["D2"]*5)
    a(f"s_lshl_b32 s{sPf}, s2, 15")
    a(f"s_lshl_b32 s{sT0}, s{sW4}, 10")
    a(f"s_add_u32 s{sPf}, s{sPf}, s{sT0}")
    for s in range(9):
        sd.slot(s, extra=(pf_group(vT) if (pf2 and s >= 1) else None))
    sd.finish()
    st.mark(3)
    a(f"s_setprio {pm}")
    a(f"s_mov_b32 s{sRslot}, {WSLOT}")
    a(f"s_cmp_eq_u32 s{sRole}, 0")
    a(f"s_cbranch_scc1 {N}_g1a")
    call("main1")
    a(f"s_branch {N}_g1b")
    a.label(f"{N}_g1a")
    call("main0")
    a.label(f"{N}_g1b")
    st.mark(4)
    a(f"s_setprio {ps}")
    a(f"s_mov_b32 s{sDslot}, {WSLOT}")
    a(f"s_mul_i32 s{sDoff}, s{sStep}, 3")
    a(f"s_add_u32 s{sDoff}, s{sDoff}, s{sCol[2]}")
    a(f"s_mov_b32 s{sColNext}, {OOB}")
    a(f"s_mov_b32 s{sN}, s{sNt[1]}")
    a(f"s_mov_b32 s{sPark}, {PARK1}")
    a(f"s_cmp_eq_u32 s{sRole}, 0")
    a(f"s_cbranch_scc1 {N}_epi_v")
    a(f"s_cmp_eq_u32 s{sRole}, 1")
    a(f"s_cbranch_scc0 {N}_g1z1")
    call("epi_z2_solo")
    st.mark(5)
    call("final")
    a(f"s_branch {N}_done")
    a.label(f"{N}_g1z1")
    call("epi_z1_side")
    st.mark(5)
    a(f"s_mov_b32 s{sN}, s{sNt[0]}")
    a(f"s_mov_b32 s{sPark}, {PARK0}")
    call("final")
    for b in range(9):
        if b % 4 == 0 and b:
            a(f"s_add_u32 s{sZ1}, s{sZ1}, 4096")
        a(f"buffer_store_dwordx4 {r4(acc(0,b))}, v{vL16}, s[12:15], s{sZ1} offen offset:{(b%4)*1024}{wt}")
    a.label(f"{N}_done")
    st.mark(6)
    if stamps:
        a("s_waitcnt vmcnt(0)")
    st.mark(7)
    st.markrt(9)
    st.dump(10, sW8, vT, vT+1)
    a.label(f"{N}_end")
    a("s_endpgm")

    for orient in range(2):
        a.raw(".p2align 6")
        a.label(f"{N}_main{orient}")
        a(f"v_add_u32 v{vRd}, s{sRslot}, v{vRdB}")
        def rd(gi, hs=(0, 1)):
            s, n = divmod(gi, 18)
            kl, b = divmod(n, 9)
            f = RING + (gi % 7) * 4
            for h in hs:
                if exp == "noread":
                    continue
                a(f"{'ds_read_b64' if exp == 'plain' else 'ds_read_b64_tr_b16'} {pr(f+2*h)}, v{vRd} offset:{kl*10240 + h*1280 + b*32}")
        for gi in range(DLOOK):
            rd(gi)
        for gi in range(162):
            s, n = divmod(gi, 18)
            kl, b = divmod(n, 9)
            ks = 2*s + kl
            if n == 18 - DLOOK:
                a(f"s_add_u32 s{sRslot}, s{sRslot}, {WSLOT}")
                a(f"s_cmp_ge_u32 s{sRslot}, {WSLOT*NRING}")
                a(f"s_cselect_b32 s{sRslot}, 0, s{sRslot}")
                if s in (0, 1):
                    a(f"s_cmp_eq_u32 s{sFirst}, 1")
                    a(f"s_cbranch_scc1 {N}_nw{orient}{s}")
                    a(f"s_waitcnt vmcnt({ {0: 6, 1: 1}[s] })")
                    a.label(f"{N}_nw{orient}{s}")
                a("s_barrier")
                if s == fs-1 and orient == 1:
                    a(f"s_cmp_eq_u32 s{sPubW}, 1")
                    a(f"s_cbranch_scc1 {N}_mflag")
                    a.label(f"{N}_mflagback")
                if s < 8:
                    a(f"v_add_u32 v{vRd}, s{sRslot}, v{vRdB}")
            if exp.startswith("w"):
                G = int(exp[1:])
                if gi % G == 0:
                    a(f"s_waitcnt lgkmcnt({max(0, min(2*(DLOOK-G), 2*(161-(gi+G-1))))})")
            else:
                a(f"s_waitcnt lgkmcnt({min(2*(DLOOK-1), 2*(161-gi))})")
            f = RING + (gi % 7) * 4
            for j in range(2):
                C = r4(acc(j, b)) if ks else "0"
                if exp == "nomfma":
                    pass
                elif orient == 0:
                    a(f"v_mfma_f32_16x16x32_bf16 {r4(acc(j,b))}, {r4(xa(j,ks))}, {r4(f)}, {C}")
                else:
                    a(f"v_mfma_f32_16x16x32_bf16 {r4(acc(j,b))}, {r4(f)}, {r4(xa(j,ks))}, {C}")
                if gi + DLOOK < 162:
                    rd(gi + DLOOK, (j,))
        a("s_nop 7")
        ret()

    def gelu8(a, A, T, pk):
        if pk:
            for i in range(4):
                a(f"v_pk_fma_f32 {pr(T+2*i)}, {pr(A+2*i)}, {pr(A+2*i)}, s[{sGC}:{sGC+1}] op_sel_hi:[1,1,0] neg_lo:[1,0,0] neg_hi:[1,0,0]")
            for i in range(4):
                a(f"v_pk_mul_f32 {pr(T+2*i)}, {pr(T+2*i)}, {pr(A+2*i)}")
            for i in range(4):
                a(f"v_exp_f32 v{T+2*i}, v{T+2*i}")
                a(f"v_exp_f32 v{T+2*i+1}, v{T+2*i+1}")
                if i:
                    a(f"v_pk_add_f32 {pr(T+2*i-2)}, {pr(T+2*i-2)}, 1.0 op_sel_hi:[1,0]")
            a(f"v_rcp_f32 v{T}, v{T}")
            a(f"v_pk_add_f32 {pr(T+6)}, {pr(T+6)}, 1.0 op_sel_hi:[1,0]")
            a(f"v_rcp_f32 v{T+1}, v{T+1}")
            for i in range(1, 4):
                a(f"v_rcp_f32 v{T+2*i}, v{T+2*i}")
                a(f"v_pk_mul_f32 {pr(A+2*i-2)}, {pr(A+2*i-2)}, {pr(T+2*i-2)}")
                a(f"v_rcp_f32 v{T+2*i+1}, v{T+2*i+1}")
            a("s_nop 0")
            a(f"v_pk_mul_f32 {pr(A+6)}, {pr(A+6)}, {pr(T+6)}")
        else:
            for i in range(8):
                a(f"v_fma_f32 v{T+i}, -v{A+i}, v{A+i}, s{sGC}")
            for i in range(8):
                a(f"v_mul_f32 v{T+i}, v{A+i}, v{T+i}")
            for i in range(8):
                a(f"v_exp_f32 v{T+i}, v{T+i}")
                if i:
                    a(f"v_add_f32 v{T+i-1}, 1.0, v{T+i-1}")
            a(f"v_rcp_f32 v{T}, v{T}")
            a(f"v_add_f32 v{T+7}, 1.0, v{T+7}")
            for i in range(1, 8):
                a(f"v_rcp_f32 v{T+i}, v{T+i}")
                a(f"v_mul_f32 v{A+i-1}, v{A+i-1}, v{T+i-1}")
            a("s_nop 0")
            a(f"v_mul_f32 v{A+7}, v{A+7}, v{T+7}")
    def phi8(a, A, T, pk):
        for i in range(8):
            a(f"v_min_f32 v{T+i}, 0, v{A+i}")
        if pk:
            for i in range(4):
                a(f"v_pk_mul_f32 {pr(T+2*i)}, {pr(T+2*i)}, s[{sL2E}:{sL2E+1}] op_sel_hi:[1,0]")
        else:
            for i in range(8):
                a(f"v_mul_f32 v{T+i}, s{sL2E}, v{T+i}")
        for i in range(8):
            a(f"v_exp_f32 v{T+i}, v{T+i}")
            a(f"v_max_f32 v{A+i}, 0, v{A+i}")
        if pk:
            for i in range(4):
                a(f"v_pk_add_f32 {pr(A+2*i)}, {pr(A+2*i)}, s[{sL2E}:{sL2E+1}] op_sel:[0,1] op_sel_hi:[1,1]")
            for i in range(4):
                a(f"v_pk_add_f32 {pr(A+2*i)}, {pr(A+2*i)}, {pr(T+2*i)}")
        else:
            for i in range(8):
                a(f"v_add_f32 v{A+i}, s{sL2E+1}, v{A+i}")
            for i in range(8):
                a(f"v_add_f32 v{A+i}, v{A+i}, v{T+i}")
    def pack8(a, A, P):
        for i in range(4):
            a(f"v_cvt_pk_bf16_f32 v{P+i}, v{A+2*i}, v{A+2*i+1}")
    TMP = RING
    STA = RING + 8
    sched9 = [[i] for i in range(9)]
    ONE = RING + 24
    def pf_extra(s):
        if not pf2:
            return None
        if s in (1, 2, 3):
            return pf_group(XJ)
        if s == 4:
            return [f"s_mov_b32 s{PFS}, s62", f"s_and_b32 s{PFS+1}, s63, 0xffff", f"s_mov_b32 s{PFS+2}, {D*D*2}",
                    f"s_lshl_b32 s{sPf}, s2, 12", f"s_lshl_b32 s{sT4}, s{sW4}, 10", f"s_add_u32 s{sPf}, s{sPf}, s{sT4}"] + pf_group(XJ)
        return None

    for solo in (False, True):
        a.raw(".p2align 6")
        a.label(f"{N}_epi_z2_{'solo' if solo else 'side'}")
        sd = Side(solo)
        for s in range(9):
            b_ = Asm()
            if s == 0:
                lane_cg(vT, vT+1, b_)
                b_(f"v_mul_u32_u24 v{vRd}, 288, v{vT}")
                b_(f"v_lshl_add_u32 v{vRd}, v{vT+1}, 3, v{vRd}")
                b_(f"s_mul_i32 s{sT0}, s{sW4}, 9216")
                b_(f"s_add_u32 s{sT0}, s{sT0}, s{sPark}")
                b_(f"v_add_u32 v{vRd}, s{sT0}, v{vRd}")
            if s == 0:
                for r in range(4):
                    b_(f"v_mov_b32 v{ONE+r}, s{sOnes}")
            for b in sched9[s]:
                A = acc(0, b)
                gelu8(b_, A, TMP, solo)
                pb, h = ACC + 16*(b//2), b % 2
                for j in range(2):
                    for q in range(2):
                        b_(f"v_cvt_pk_bf16_f32 v{pb+4*j+2*h+q}, v{A+4*j+2*q}, v{A+4*j+2*q+1}")
                if b == 8:
                    for j in range(2):
                        b_(f"v_mov_b32 v{pb+4*j+2}, 0")
                        b_(f"v_mov_b32 v{pb+4*j+3}, 0")
                for j in range(2):
                    b_(f"ds_write_b64 v{vRd}, {pr(pb+4*j+2*h)} offset:{j*4608 + b*32}")
                if h == 1 or b == 8:
                    for j in range(2):
                        C1 = r4(STA+8*j) if b > 1 else "0"
                        C2 = r4(STA+8*j+4) if b > 1 else "0"
                        b_(f"v_mfma_f32_16x16x32_bf16 {r4(STA+8*j)}, {r4(ONE)}, {r4(pb+4*j)}, {C1}")
                        b_(f"v_mfma_f32_16x16x32_bf16 {r4(STA+8*j+4)}, {r4(pb+4*j)}, {r4(pb+4*j)}, {C2}")
            sd.slot(s, b_, extra=pf_extra(s), lgkm=(s == 8))
        sd.finish(pad=False)
        a("s_nop 3")
        lane_cg(vT, vT+1, a)
        a(f"v_and_b32 v{vT+2}, 3, v{vT}")
        for q in range(1, 4):
            a(f"v_cmp_eq_u32 vcc, {q}, v{vT+2}")
            a("s_nop 1")
            for j in range(2):
                a(f"v_cndmask_b32 v{STA+8*j+4}, v{STA+8*j+4}, v{STA+8*j+4+q}, vcc")
        a(f"v_lshrrev_b32 v{vT+2}, 2, v{vT}")
        a(f"v_lshlrev_b32 v{vT+2}, 6, v{vT+2}")
        a(f"v_lshl_add_u32 v{vT+2}, v{vT}, 2, v{vT+2}")
        for j in range(2):
            a(f"ds_bpermute_b32 v{STA+8*j+1}, v{vT+2}, v{STA+8*j+4}")
        get_tag()
        a(f"v_mov_b32 v{vT+3}, {OOB}")
        a(f"v_cmp_gt_u32 vcc, 2, v{vT+1}")
        a(f"s_lshl_b32 s{sT0}, s{sM}, 4")
        a(f"s_add_u32 s{sT0}, s{sT0}, s{sN}")
        a(f"v_cndmask_b32 v{vT+2}, v{vT+3}, v{vL16}, vcc")
        a(f"v_cmp_eq_u32 vcc, 1, v{vT+1}")
        a(f"s_lshl_b32 s{sT0}, s{sT0}, 2")
        a(f"s_add_u32 s{sT0}, s{sT0}, s{sW4}")
        a(f"v_cndmask_b32 v{STA}, v{STA}, v{STA+8}, vcc")
        a(f"v_cndmask_b32 v{STA+1}, v{STA+1}, v{STA+9}, vcc")
        a(f"v_mov_b32 v{STA+2}, s{sTag}")
        a(f"v_mov_b32 v{STA+3}, s{sTag+1}")
        a(f"s_lshl_b32 s{sT0}, s{sT0}, 9")
        a(f"s_add_u32 s{sT0}, s{sT0}, {WS_ST}")
        a(f"buffer_store_dwordx4 {r4(STA)}, v{vT+2}, s[12:15], s{sT0} offen sc1")
        ret()

    a.raw(".p2align 6")
    a.label(f"{N}_epi_k_side")
    sd = Side(False)
    for s in range(9):
        b_ = Asm()
        if s == 0:
            b_(f"s_lshl_b32 s{sT0}, s{sW4}, 10")
            b_(f"s_add_u32 s{sT0}, s{sT0}, s{sPark}")
            b_(f"v_add_u32 v{vRd}, s{sT0}, v{vL16}")
        A = acc(0, s)
        phi8(b_, A, TMP, False)
        pack8(b_, A, A)
        b_(f"ds_write_b128 v{vRd}, {r4(A)} offset:{s*4096}")
        sd.slot(s, b_, extra=pf_extra(s), lgkm=(s == 8))
    sd.finish()
    ret()

    for solo in (False, True):
        a.raw(".p2align 6")
        a.label(f"{N}_epi_z1_{'solo' if solo else 'side'}")
        sd = Side(solo, last=True)
        for s in range(9):
            b_ = Asm()
            if s == 0:
                b_(f"s_lshl_b32 s{sT2}, s{sM}, 4")
                b_(f"s_add_u32 s{sT2}, s{sT2}, s{sN}")
                b_(f"s_lshl_b32 s{sT2}, s{sT2}, 2")
                b_(f"s_add_u32 s{sT2}, s{sT2}, s{sW4}")
                b_(f"s_mul_i32 s{sT2}, s{sT2}, 9216")
                b_(f"s_add_u32 s{sT2 if solo else sZ1}, s{sT2}, {WS_Z1}")
            A = acc(0, s)
            gelu8(b_, A, TMP, solo)
            pack8(b_, A, A)
            if solo:
                if s % 4 == 0 and s:
                    b_(f"s_add_u32 s{sT2}, s{sT2}, 4096")
                b_(f"buffer_store_dwordx4 {r4(A)}, v{vL16}, s[12:15], s{sT2} offen offset:{(s%4)*1024}{wt}")
            if s == es and not solo:
                b0 = Asm()
                stat_loads(b0)
                b0(f"s_mov_b32 s{sEarly}, 1")
                b_.lines = b0.lines + b_.lines
            if s == 6 and not solo and ep:
                b0 = Asm()
                b0(f"s_cmp_lg_u32 s{sW4}, 0")
                b0(f"s_cbranch_scc1 {N}_ep0")
                b0(f"s_lshl_b32 s{sT0}, s{sM}, 4")
                b0(f"v_mov_b32 v{vT+2}, 0")
                b0(f"buffer_load_dwordx4 {r4(STA)}, v{vT+2}, s[16:19], s{sT0} offen sc1 ;nc")
                b0.label(f"{N}_ep0")
                for l in b0.lines:
                    a.raw(l)
            if s == 8 and not solo and ep:
                b_(f"s_cmp_lg_u32 s{sW4}, 0")
                b_(f"s_cbranch_scc1 {N}_ep1")
                b_(f"v_and_b32 v{STA}, v{STA}, v{STA+1}")
                b_("s_nop 0")
                b_(f"v_and_b32 v{STA+2}, v{STA+2}, v{STA+3}")
                b_("s_nop 0")
                b_(f"v_and_b32 v{STA}, v{STA}, v{STA+2}")
                b_("s_nop 0")
                b_(f"v_readfirstlane_b32 s{sT1}, v{STA}")
                b_(f"s_and_b32 s{sT1}, s{sT1}, 0x01010100")
                b_(f"s_cmp_lg_u32 s{sT1}, 0x01010100")
                b_(f"s_cbranch_scc1 {N}_ep1")
                b_(f"v_mov_b32 v{STA}, 1")
                b_("s_nop 0")
                b_(f"v_mov_b32 v{STA+1}, {LFLAG}")
                b_(f"ds_write_b32 v{STA+1}, v{STA}")
                b_.label(f"{N}_ep1")
            sd.slot(s, b_, lgkm=(s == 8))
        ret()

    a.raw(".p2align 6")
    a.label(f"{N}_epi_q")
    lane_cg(vT, vT+1)
    a(f"v_lshlrev_b32 v{vRd}, 6, v{vT}")
    a(f"v_lshl_add_u32 v{vRd}, v{vT+1}, 4, v{vRd}")
    a(f"s_mul_i32 s{sT2}, s{sN}, {5*PLANE}")
    a(f"s_lshl_b32 s{sT3}, s{sM}, 13")
    a(f"s_add_u32 s{sT2}, s{sT2}, s{sT3}")
    a(f"s_lshl_b32 s{sT3}, s{sW4}, 11")
    a(f"s_add_u32 s{sT2}, s{sT2}, s{sT3}")
    a(f"s_add_u32 s{sT2}, s{sT2}, {WS_PQ}")
    QO = RING + 8
    for p in range(5):
        Q = QO + (p % 2) * 8
        for h in range(2):
            b = 2*p + h
            if b < 9:
                A = acc(0, b)
                phi8(a, A, TMP, True)
                for j in range(2):
                    a(f"v_cvt_pk_bf16_f32 v{Q+j*4+h*2}, v{A+j*4}, v{A+j*4+1}")
                    a(f"v_cvt_pk_bf16_f32 v{Q+j*4+h*2+1}, v{A+j*4+2}, v{A+j*4+3}")
            else:
                for j in range(2):
                    a(f"v_mov_b32 v{Q+j*4+2}, 0")
                    a(f"v_mov_b32 v{Q+j*4+3}, 0")
        for j in range(2):
            swap_pair(a, Q + j*4)
            a(f"buffer_store_dwordx4 {r4(Q+j*4)}, v{vRd}, s[12:15], s{sT2} offen offset:{j*1024}{wt}")
        a(f"s_add_u32 s{sT2}, s{sT2}, {PLANE}")
    ret()

    a.raw(".p2align 6")
    a.label(f"{N}_final")
    lane_cg(vT, vT+1)
    a(f"v_lshrrev_b32 v{vT+2}, 2, v{vT}")
    a(f"v_lshl_add_u32 v{vT+2}, v{vT+1}, 3, v{vT+2}")
    a(f"v_mul_u32_u24 v{vT+2}, 288, v{vT+2}")
    a(f"v_and_b32 v{vT+3}, 3, v{vT}")
    a(f"v_lshl_add_u32 v{vT+2}, v{vT+3}, 3, v{vT+2}")
    a(f"s_mul_i32 s{sT0}, s{sW4}, 9216")
    a(f"s_add_u32 s{sT0}, s{sT0}, s{sPark}")
    a(f"v_add_u32 v{vRd}, s{sT0}, v{vT+2}")
    for b in range(9):
        for h in range(2):
            a(f"ds_read_b64_tr_b16 {pr(XA+4*b+2*h)}, v{vRd} offset:{h*1152 + b*32}")
        if b == 5:
            a("s_waitcnt lgkmcnt(4)")
    if fine: st.mark(1)
    get_tag()
    RS = XA + 40
    a(f"s_mov_b32 s{sSpin}, 0")
    a(f"s_cmp_eq_u32 s{sEarly}, 1")
    a(f"s_cbranch_scc1 {N}_fhave")
    a.label(f"{N}_fload")
    stat_loads(a)
    a.label(f"{N}_fhave")
    a(f"v_and_b32 v{vT+3}, 0x1f0, v{vL16}")
    a(f"s_and_b32 s{sT1}, s{sW4}, 1")
    a(f"s_lshl_b32 s{sT1}, s{sT1}, 2")
    a(f"v_or_b32 v{TMP+3}, s{sT1}, v{vT+1}")
    a(f"v_and_b32 v{TMP+4}, 7, v{vT}")
    a(f"v_xor_b32 v{TMP+3}, v{TMP+3}, v{TMP+4}")
    a(f"v_lshlrev_b32 v{TMP+3}, 4, v{TMP+3}")
    a(f"v_lshl_add_u32 v{vRd}, v{vT}, 7, v{TMP+3}")
    a(f"s_lshl_b32 s{sT0}, s{sN}, 5")
    a(f"s_lshl_b32 s{sT1}, s{sM}, 1")
    a(f"s_add_u32 s{sT0}, s{sT0}, s{sT1}")
    a(f"s_lshr_b32 s{sT1}, s{sW4}, 1")
    a(f"s_add_u32 s{sT0}, s{sT0}, s{sT1}")
    a(f"s_mul_i32 s{sT0}, s{sT0}, 18432")
    a(f"s_add_u32 s{sT0}, s{sT0}, {WS_Z2T}")
    a(f"s_lshl_b32 s{sT1}, s{sW8}, 8")
    a(f"s_add_u32 s{sT1}, s{sT1}, {LSTAT}")
    a(f"v_lshrrev_b32 v{TMP+5}, 2, v{vT+3}")
    a(f"v_add_u32 v{TMP+5}, s{sT1}, v{TMP+5}")
    a(f"v_lshlrev_b32 v{TMP+6}, 5, v{vT+1}")
    a(f"v_add_u32 v{TMP+6}, s{sT1}, v{TMP+6}")
    a("s_waitcnt vmcnt(0)")
    if fine: st.mark(2)
    for q in range(8):
        a(f"v_xor_b32 v{GR+4*q+2}, s{sTag}, v{GR+4*q+2}")
        a(f"v_xor_b32 v{GR+4*q+3}, s{sTag+1}, v{GR+4*q+3}")
    for q in range(8):
        if q:
            a(f"v_or3_b32 v{GR+2}, v{GR+2}, v{GR+4*q+2}, v{GR+4*q+3}")
            a(f"v_pk_add_f32 {pr(GR)}, {pr(GR)}, {pr(GR+4*q)}")
        else:
            a(f"v_or_b32 v{GR+2}, v{GR+2}, v{GR+3}")
    a(f"v_cmp_ne_u32 vcc, 0, v{GR+2}")
    a(f"v_mov_b32 v{GR+4}, v{GR}")
    a(f"v_mov_b32 v{GR+5}, v{GR+1}")
    a("s_nop 2")
    a("s_cmp_lg_u64 vcc, 0")
    a(f"s_cbranch_scc1 {N}_fwait")
    a.label(f"{N}_fgo")
    b = Asm(); pend.append(b)
    b.label(f"{N}_fwait")
    b(f"v_lshlrev_b32 v{TMP}, 11, v{vT}")
    b(f"s_cmp_eq_u32 s{sEarly}, 1")
    b(f"s_mov_b32 s{sEarly}, 0")
    b(f"s_cbranch_scc1 {N}_fload")
    b.label(f"{N}_fpoll")
    b(f"s_sleep {pslp}")
    b(f"buffer_load_dword v{TMP+1}, v{TMP}, s[12:15], s{sSt} offen offset:8 sc1")
    b(f"s_add_u32 s{sSpin}, s{sSpin}, 1")
    b("s_waitcnt vmcnt(0)")
    b(f"v_cmp_ne_u32 vcc, s{sTag}, v{TMP+1}")
    b(f"s_cmp_gt_u32 s{sSpin}, 0x20000")
    b(f"s_cbranch_scc1 {N}_fgo")
    b("s_nop 2")
    b("s_cmp_lg_u64 vcc, 0")
    b(f"s_cbranch_scc1 {N}_fpoll")
    b(f"s_branch {N}_fload")
    if fine: st.mark(3)
    a(f"v_permlane32_swap_b32 v{GR}, v{GR+4}")
    a(f"v_permlane32_swap_b32 v{GR+1}, v{GR+5}")
    a("s_nop 1")
    a(f"v_pk_add_f32 {pr(GR)}, {pr(GR)}, {pr(GR+4)}")
    inv = f2h(1.0/2304)
    a(f"v_mul_f32 v{GR}, {inv}, v{GR}")
    a(f"v_mul_f32 v{GR+1}, {inv}, v{GR+1}")
    a(f"v_fma_f32 v{GR+1}, -v{GR}, v{GR}, v{GR+1}")
    a(f"v_max_f32 v{GR+1}, 0, v{GR+1}")
    a(f"v_add_f32 v{GR+1}, {f2h(1e-5*GK*GK)}, v{GR+1}")
    a(f"v_rsq_f32 v{GR+1}, v{GR+1}")
    a("s_nop 0")
    a(f"v_mul_f32 v{GR+1}, {f2h(1.0/GK)}, v{GR+1}")
    a(f"v_mul_f32 v{GR}, v{GR}, v{GR+1}")
    a(f"v_sub_f32 v{GR}, 0, v{GR}")
    a(f"ds_write_b32 v{TMP+5}, v{GR+1}")
    a(f"ds_write_b32 v{TMP+5}, v{GR} offset:128")
    for q in range(4):
        a(f"ds_read_b128 {r4(RS+4*q)}, v{TMP+6} offset:{(q>>1)*128 + (q&1)*16}")
    if prefetch:
        a(f"s_cmp_eq_u32 s{sRole}, 1")
        a(f"s_cselect_b32 s{sT1}, s{sG}, s{sRole}")
        a(f"s_lshl_b32 s{sT2}, s{sM}, 2")
        a(f"s_add_u32 s{sT2}, s{sT2}, s{sCG}")
        a(f"s_lshl_b32 s{sT2}, s{sT2}, 2")
        a(f"s_add_u32 s{sT1}, s{sT1}, s{sT2}")
        a(f"s_lshl_b32 s{sT1}, s{sT1}, 2")
        a(f"s_add_u32 s{sT1}, s{sT1}, s{sW4}")
        a(f"s_lshl_b32 s{sPf}, s{sT1}, 13")
        for i in range(8):
            if i == 4:
                a(f"s_add_u32 s{sPf}, s{sPf}, 4096")
            a(f"buffer_load_dwordx4 {r4(XA+60)}, v{vL16}, s[{PFS}:{PFS+3}], s{sPf} offen offset:{(i%4)*1024}")
        srd(a, PFS, 60, FH*D*2)
        a(f"s_mul_i32 s{sPf}, s{sT1}, 3072")
        for i in range(3):
            a(f"buffer_load_dwordx4 {r4(XA+60)}, v{vL16}, s[{PFS}:{PFS+3}], s{sPf} offen offset:{i*1024}")
        srd(a, PFS, 62, D*D*2)
        a(f"s_lshl_b32 s{sPf}, s{sT1}, 10")
        a(f"buffer_load_dwordx4 {r4(XA+60)}, v{vL16}, s[{PFS}:{PFS+3}], s{sPf} offen")
    a("s_waitcnt lgkmcnt(0)")
    if fine: st.mark(4)
    for b in range(9):
        P = XA + 4*b
        for i in range(4):
            a(f"v_lshlrev_b32 v{TMP+2*i}, 16, v{P+i}")
            a(f"v_and_b32 v{TMP+2*i+1}, 0xffff0000, v{P+i}")
        for i in range(4):
            a(f"v_pk_fma_f32 {pr(TMP+2*i)}, {pr(TMP+2*i)}, {pr(RS+2*i)}, {pr(RS+8+2*i)}")
        pack8(a, TMP, P)
        a(f"buffer_store_dwordx4 {r4(P)}, v{vRd}, s[12:15], s{sT0} offen offset:{(b%2)*2048}{wt}")
        if b % 2:
            a(f"s_add_u32 s{sT0}, s{sT0}, 4096")
    ret()

    a.raw(".p2align 6")
    a.label(f"{N}_epi_v")
    sd = Side(False, last=True)
    b_ = Asm()
    b_(f"s_lshl_b32 s{sT0}, s{sW4}, 10")
    b_(f"s_add_u32 s{sT0}, s{sT0}, {PARK1}")
    b_(f"v_add_u32 v{vRd}, s{sT0}, v{vL16}")
    for b in range(9):
        A = acc(0, b)
        pack8(b_, A, A)
        b_(f"ds_write_b128 v{vRd}, {r4(A)} offset:{b*4096}")
    sd.slot(0, b_, lgkm=True)
    PK = XA; VV = XA + 64; KA = ACC
    b_ = Asm()
    b_(f"s_lshl_b32 s{sT0}, s{sW4}, 13")
    b_(f"s_add_u32 s{sT1}, s{sT0}, {PARK0-4096}")
    b_(f"v_add_u32 v{vT+1}, s{sT1}, v{vL16}")
    b_(f"s_add_u32 s{sT1}, s{sT0}, {PARK1}")
    b_(f"v_add_u32 v{vT+2}, s{sT1}, v{vL16}")
    for i in range(16):
        b_(f"ds_read_b128 {r4(PK+4*i)}, v{vT+1} offset:{i*1024}")
        if i == 11:
            b_("s_waitcnt lgkmcnt(0)")
    b_("s_waitcnt lgkmcnt(0)")
    for i in range(12):
        b_(f"ds_read_b128 {r4(VV+4*i)}, v{vT+2} offset:{i*1024}")
    ON = RING
    for r in range(4):
        b_(f"v_mov_b32 v{ON+r}, 0x3f803f80")
    b_("s_waitcnt lgkmcnt(0)")
    sd.slot(1, b_)
    blocks = [(0,0),(1,0),(2,0),(1,1),(2,1),(3,1),(2,2),(3,2)]
    for half in range(2):
        b_ = Asm()
        for rg in (2*half, 2*half+1):
            for i, (pa, vb) in enumerate(blocks):
                C = r4(KA+4*i) if rg else "0"
                b_(f"v_mfma_f32_16x16x32_bf16 {r4(KA+4*i)}, {r4(PK+(pa*4+rg)*4)}, {r4(VV+(vb*4+rg)*4)}, {C}")
            for i in range(3):
                C = r4(KA+32+4*i) if rg else "0"
                b_(f"v_mfma_f32_16x16x32_bf16 {r4(KA+32+4*i)}, {r4(PK+((1+i)*4+rg)*4)}, {r4(ON)}, {C}")
        if half == 0:
            sd.slot(2, b_)
    b_(f"s_lshl_b32 s{sT0}, s{sCG}, 4")
    b_(f"s_add_u32 s{sT0}, s{sT0}, s{sM}")
    b_(f"s_mul_i32 s{sT0}, s{sT0}, 36864")
    b_(f"s_add_u32 s{sT0}, s{sT0}, {WS_KVP}")
    b_(f"s_mul_i32 s{sT1}, s{sW4}, 6144")
    b_(f"s_add_u32 s{sT1}, s{sT1}, s{sT0}")
    b_(f"s_lshl_b32 s{sT2}, s{sW4}, 11")
    b_(f"s_add_u32 s{sT2}, s{sT2}, s{sT0}")
    b_(f"s_add_u32 s{sT2}, s{sT2}, {27*1024}")
    b_("s_nop 4")
    for i in range(6):
        if i == 4:
            b_(f"s_add_u32 s{sT1}, s{sT1}, 4096")
        b_(f"buffer_store_dwordx4 {r4(KA+4*i)}, v{vL16}, s[12:15], s{sT1} offen offset:{(i%4)*1024} sc1")
    for i in range(2):
        b_(f"buffer_store_dwordx4 {r4(KA+32+4*i)}, v{vL16}, s[12:15], s{sT2} offen offset:{i*1024} sc1")
    b_(f"s_cmp_lg_u32 s{sW4}, 3")
    b_(f"s_cbranch_scc1 {N}_kv3")
    for i in range(2):
        b_(f"buffer_store_dwordx4 {r4(KA+24+4*i)}, v{vL16}, s[12:15], s{sT1} offen offset:{2048+i*1024} sc1 ;nc")
    b_(f"buffer_store_dwordx4 {r4(KA+40)}, v{vL16}, s[12:15], s{sT2} offen offset:2048 sc1 ;nc")
    b_.label(f"{N}_kv3")
    sd.slot(3, b_)
    sd.slot(4)
    sd.slot(5)
    for s in range(6, 9):
        sd.slot(s)
    st.mark(5)
    a(f"s_cmp_ge_u32 s{sM}, 9")
    a(f"s_cbranch_scc1 {N}_done")
    lane_cg(vT+1, vT+2)
    get_tag()
    a(f"v_lshlrev_b32 v{TMP}, 8, v{vT+1}")
    a(f"s_lshl_b32 s{sT0}, s{sCG}, 12")
    a(f"s_add_u32 s{sT0}, s{sT0}, {WS_KFL}")
    a(f"s_mov_b32 s{sSpin}, 0")
    a.label(f"{N}_kpoll")
    a(f"buffer_load_dword v{TMP+1}, v{TMP}, s[12:15], s{sT0} offen sc1")
    a(f"s_add_u32 s{sSpin}, s{sSpin}, 1")
    a("s_waitcnt vmcnt(0)")
    a(f"v_cmp_eq_u32 vcc, s{sTag}, v{TMP+1}")
    a("s_nop 4")
    a("s_cmp_eq_u64 vcc, -1")
    a(f"s_cbranch_scc1 {N}_kgo")
    a("s_sleep 8")
    a(f"s_cmp_lt_u32 s{sSpin}, 0x20000")
    a(f"s_cbranch_scc1 {N}_kpoll")
    a.label(f"{N}_kgo")
    tab = 0
    for b in range(9):
        tab |= PB[b] << (2*b)
    a(f"s_lshl_b32 s{sT0}, s{sM}, 1")
    a(f"s_lshr_b32 s{sT0}, {tab:#x}, s{sT0}")
    a(f"s_and_b32 s{sT0}, s{sT0}, 3")
    a(f"s_and_b32 s{sT1}, s{sW4}, 1")
    a(f"s_add_u32 s{sT0}, s{sT0}, s{sT1}")
    a(f"s_lshl_b32 s{sT0}, s{sT0}, 1")
    a(f"s_mul_i32 s{sT4}, s{sCG}, {16*36864}")
    a(f"s_add_u32 s{sT4}, s{sT4}, {WS_KVP}")
    LD = XA
    for h in range(2):
        a(f"s_add_u32 s{sT1}, s{sT0}, {h}")
        a(f"s_sub_u32 s{sT2}, s{sT1}, s{sM}")
        a(f"s_add_u32 s{sT2}, s{sT2}, 1")
        a(f"s_mul_i32 s{sT3}, s{sM}, 3")
        a(f"s_add_u32 s{sT3}, s{sT3}, s{sT2}")
        a(f"s_add_u32 s{sPf}, s{sT1}, 27")
        a(f"s_cmp_ge_u32 s{sW4}, 2")
        a(f"s_cselect_b32 s{sT3}, s{sPf}, s{sT3}")
        a(f"s_lshl_b32 s{sT3}, s{sT3}, 10")
        a(f"s_add_u32 s{sT3}, s{sT3}, s{sT4}")
        a(f"s_cmp_lt_u32 s{sT2}, 3")
        a(f"s_cselect_b32 s{sT3}, s{sT3}, {OOB}")
        a(f"s_cmp_lt_u32 s{sT1}, 9")
        a(f"s_cselect_b32 s{sT3}, s{sT3}, {OOB}")
        for mm in range(16):
            a(f"buffer_load_dwordx4 {r4(LD+(h*16+mm)*4)}, v{vL16}, s[12:15], s{sT3} offen sc1")
            a(f"s_add_u32 s{sT3}, s{sT3}, 36864")
    a(f"s_lshl_b32 s{sT1}, s{sM}, 4")
    a(f"v_add_u32 v{TMP}, s{sT1}, v{vT+1}")
    a(f"v_mul_u32_u24 v{TMP}, 3641, v{TMP}")
    a(f"v_lshrrev_b32 v{TMP}, 16, v{TMP}")
    a(f"s_lshl_b32 s{sT1}, s{sT0}, 4")
    a(f"v_lshlrev_b32 v{TMP+1}, 2, v{vT+2}")
    a(f"v_add_u32 v{TMP+1}, s{sT1}, v{TMP+1}")
    for h in range(2):
        for mm in range(1, 16):
            a(f"s_waitcnt vmcnt({31 - (h*16+mm)})")
            for i in range(2):
                a(f"v_pk_add_f32 {pr(LD+h*64+2*i)}, {pr(LD+h*64+2*i)}, {pr(LD+(h*16+mm)*4+2*i)}")
        for r in range(4):
            a(f"v_add_u32 v{TMP+2}, {16*h+r}, v{TMP+1}")
            a(f"v_mul_u32_u24 v{TMP+2}, 3641, v{TMP+2}")
            a(f"v_lshrrev_b32 v{TMP+2}, 16, v{TMP+2}")
            a(f"v_cmp_eq_u32 vcc, v{TMP+2}, v{TMP}")
            a("s_nop 1")
            a(f"v_cndmask_b32 v{LD+h*64+r}, 0, v{LD+h*64+r}, vcc")
        a(f"v_cvt_pk_bf16_f32 v{STA+2*h}, v{LD+h*64}, v{LD+h*64+1}")
        a(f"v_cvt_pk_bf16_f32 v{STA+2*h+1}, v{LD+h*64+2}, v{LD+h*64+3}")
    swap_pair(a, STA)
    a(f"s_mul_i32 s{sT1}, s{sCG}, 36864")
    a(f"s_lshl_b32 s{sT2}, s{sM}, 12")
    a(f"s_add_u32 s{sT1}, s{sT1}, s{sT2}")
    a(f"s_lshl_b32 s{sT2}, s{sW4}, 10")
    a(f"s_add_u32 s{sT1}, s{sT1}, s{sT2}")
    a(f"s_add_u32 s{sT1}, s{sT1}, {WS_KVF}")
    a(f"buffer_store_dwordx4 {r4(STA)}, v{vL16}, s[12:15], s{sT1} offen{wt}")
    a(f"s_branch {N}_done")
    for b in pend:
        a.lines += b.lines
    a.label(f"{N}_mflag")
    a(f"s_lshl_b32 s{sT0}, s{sCG}, 4")
    a(f"s_add_u32 s{sT0}, s{sT0}, s{sM}")
    a(f"s_lshl_b32 s{sT0}, s{sT0}, 8")
    a(f"s_add_u32 s{sT0}, s{sT0}, {WS_KFL}")
    a(f"v_mov_b32 v{vT}, s{sTag}")
    a(f"v_lshrrev_b32 v{vT+1}, 2, v{vL16}")
    a(f"buffer_store_dword v{vT}, v{vT+1}, s[12:15], s{sT0} offen sc1")
    a(f"s_branch {N}_mflagback")
    a.label(f"{N}_nonce")
    a(f"s_memrealtime s[{sTag}:{sTag+1}]")
    a(f"v_mov_b32 v{RING+1}, 0")
    a("s_waitcnt lgkmcnt(0)")
    a(f"s_or_b32 s{sTag}, s{sTag}, 1")
    a(f"v_mov_b32 v{RING}, s{sTag}")
    a("s_mov_b64 exec, 1")
    a(f"buffer_store_dword v{RING}, v{RING+1}, s[16:19], s{sTagOff} offen sc1")
    a("s_mov_b64 exec, -1")
    a(f"s_branch {N}_nonceback")
    a.label(f"{N}_nonce2")
    a(f"s_mov_b32 s{sSpin}, 0")
    a.label(f"{N}_nonce3")
    a("s_waitcnt vmcnt(0)")
    a(f"v_readfirstlane_b32 s{sT0}, v{vT}")
    a(f"s_add_u32 s{sSpin}, s{sSpin}, 1")
    a(f"s_cmp_lg_u32 s{sT0}, 0")
    a(f"s_cbranch_scc1 {N}_nonce4")
    a(f"s_cmp_gt_u32 s{sSpin}, 0x20000")
    a(f"s_cbranch_scc1 {N}_nonce4")
    a("s_sleep 8")
    a(f"buffer_load_dword v{vT}, v{vT+1}, s[16:19], s{sTagOff} offen sc1")
    a(f"s_branch {N}_nonce3")
    a.label(f"{N}_nonce4")
    a(f"v_mov_b32 v{vT+1}, {LFLAG}")
    a(f"ds_write_b32 v{vT+1}, v{vT}")
    a("s_waitcnt lgkmcnt(0)")
    a(f"s_branch {N}_nonce2back")
    return NV
```

```python
import struct
from asmlib import *
from layout import *
WT = " sc1"

SLOT = 34816
NSLOT = 4
K2_LDS = SLOT * NSLOT

def r4(x): return f"v[{x}:{x+3}]"

def swap_pair(a, Q):
    a("s_nop 1")
    a(f"v_permlane32_swap_b32 v{Q}, v{Q+2}")
    a(f"v_permlane32_swap_b32 v{Q+1}, v{Q+3}")
    a("s_nop 0")
    a(f"v_permlane16_swap_b32 v{Q}, v{Q+2}")
    a(f"v_permlane16_swap_b32 v{Q+1}, v{Q+3}")

def gen_k2(a, name="k2_kernel", side=True, stamps=False, UNR=4, pfw=True, pb=4, pa=2):
    st = Stamps(a, stamps, 1)
    ACC = 0
    FR = 72
    Z1R = 160
    vW0, vW1, vZ0, vZ1 = 196, 197, 198, 199
    bW0, bW1, bZ0, bZ1 = 200, 201, 202, 203
    vT0, vT1, vT2, vT3 = 204, 205, 206, 207
    vLane, vC, vG = 208, 209, 210
    vSt, vSt1 = 211, 212
    vBias0, vBias1 = 214, 215
    NV = 216
    def acc(j, b): return ACC + (j*9+b)*4
    def frW(s, j): return FR + s*44 + j*4
    def frZ(s, b): return FR + s*44 + 8 + b*4
    kernel_header(a, name)
    a("s_cmp_ge_u32 s2, 256")
    a(f"s_cbranch_scc1 {name}_end")
    st.mark(0)
    st.markrt(6)
    a("s_load_dwordx4 s[4:7], s[0:1], 40")
    a("s_load_dwordx2 s[8:9], s[0:1], 80")
    a("s_load_dwordx2 s[56:57], s[0:1], 56")
    a("s_load_dwordx2 s[58:59], s[0:1], 16")
    a(f"v_lshrrev_b32 v{vT0}, 6, v0")
    a(f"v_and_b32 v{vLane}, 63, v0")
    a(f"v_readfirstlane_b32 s29, v{vT0}")
    a("s_and_b32 s24, s2, 7")
    a("s_lshr_b32 s25, s2, 3")
    a("s_and_b32 s26, s24, 1")
    a("s_lshl_b32 s26, s26, 3")
    a("s_and_b32 s27, s25, 7")
    a("s_add_u32 s26, s26, s27")
    a("s_lshr_b32 s27, s24, 1")
    a("s_lshl_b32 s27, s27, 2")
    a("s_lshr_b32 s28, s25, 3")
    a("s_add_u32 s27, s27, s28")
    a("s_lshl_b32 s30, s24, 2")
    a(f"v_and_b32 v{vC}, 15, v{vLane}")
    a(f"v_lshrrev_b32 v{vG}, 4, v{vLane}")
    a(f"v_lshrrev_b32 v{vT0}, 2, v{vC}")
    a(f"v_sub_u32 v{vT0}, 0, v{vT0}")
    a(f"v_and_b32 v{vT0}, 3, v{vT0}")
    a(f"v_xor_b32 v{vT1}, v{vT0}, v{vG}")
    a(f"v_lshlrev_b32 v{vT1}, 4, v{vT1}")
    a(f"v_lshl_add_u32 v{vSt}, v{vC}, 6, v{vT1}")
    a(f"v_lshrrev_b32 v{vT1}, 1, v{vG}")
    a(f"v_xor_b32 v{vT1}, v{vT0}, v{vT1}")
    a(f"v_lshlrev_b32 v{vT1}, 4, v{vT1}")
    a(f"v_lshl_add_u32 v{vSt1}, v{vC}, 6, v{vT1}")
    a(f"v_and_b32 v{vT1}, 1, v{vG}")
    a(f"v_lshl_add_u32 v{vSt1}, v{vT1}, 3, v{vSt1}")
    a("s_waitcnt lgkmcnt(0)")
    srd(a, 12, 4, S*S*2)
    srd(a, 16, 8, WS_END)
    srd(a, 20, 6, S*2)
    a("s_cmp_ge_u32 s29, 4")
    a(f"s_cbranch_scc1 {name}_loader")
    a("s_lshl_b32 s32, s26, 7")
    a("s_lshl_b32 s33, s29, 5")
    a("s_add_u32 s32, s32, s33")
    a(f"v_add_u32 v{vT1}, s32, v{vC}")
    a(f"v_lshlrev_b32 v{vT2}, 1, v{vT1}")
    a(f"buffer_load_ushort v{vBias0}, v{vT2}, s[20:23], 0 offen")
    a(f"buffer_load_ushort v{vBias1}, v{vT2}, s[20:23], 0 offen offset:32")
    a("s_lshl_b32 s31, s26, 4")
    a("s_add_u32 s31, s31, s27")
    a("s_lshl_b32 s31, s31, 2")
    a("s_add_u32 s31, s31, s29")
    a("s_mul_i32 s31, s31, 9216")
    a(f"s_add_u32 s31, s31, {WS_Z1}")
    a("s_mul_i32 s35, s27, 9")
    a("s_lshr_b32 s35, s35, 1")
    a(f"s_mul_i32 s35, s35, {PLANE}")
    a("s_lshl_b32 s33, s32, 6")
    a("s_add_u32 s35, s35, s33")
    a(f"s_add_u32 s35, s35, {WS_HO}")
    a(f"v_and_b32 v{vT0}, 7, v{vC}")
    a(f"v_xor_b32 v{vT0}, v{vT0}, v{vG}")
    a(f"v_lshlrev_b32 v{vT0}, 4, v{vT0}")
    a(f"v_lshl_add_u32 v{vT0}, v{vC}, 7, v{vT0}")
    a(f"v_xor_b32 v{vT2}, 64, v{vT0}")
    a("s_lshl_b32 s33, s29, 12")
    a(f"v_add_u32 v{bW0}, s33, v{vT0}")
    a(f"v_add_u32 v{bW1}, s33, v{vT2}")
    a(f"v_add_u32 v{bZ0}, 16384, v{vT0}")
    a(f"v_add_u32 v{bZ1}, 16384, v{vT2}")
    a(f"v_lshlrev_b32 v{vT3}, 4, v{vLane}")
    a("s_waitcnt vmcnt(0)")
    a(f"v_lshlrev_b32 v{vBias0}, 16, v{vBias0}")
    a(f"v_lshlrev_b32 v{vBias1}, 16, v{vBias1}")
    ik = hex(struct.unpack("<I", struct.pack("<f", 1.0/GK))[0])
    a(f"v_mul_f32 v{vBias0}, {ik}, v{vBias0}")
    a(f"v_mul_f32 v{vBias1}, {ik}, v{vBias1}")
    for j in range(2):
        for i in range(36):
            a(f"v_mov_b32 v{ACC+j*36+i}, v{vBias0+j}")
    a("s_mov_b32 s36, 0")
    st.mark(1)
    a("s_barrier")
    st.mark(2)
    def reads(s, vW, vZ):
        L = [f"ds_read_b128 {r4(frW(s,j))}, v{vW} offset:{j*2048}" for j in range(2)]
        L += [f"ds_read_b128 {r4(frZ(s,b))}, v{vZ} offset:{b*2048}" for b in range(9)]
        return L
    for r in reads(0, bW0, bZ0):
        a(r)
    a(f"s_mov_b32 s37, {32//UNR}")
    a.raw(".p2align 6")
    a.label(f"{name}_loop")
    def half(su, rl):
        idx = 0
        for b in range(9):
            for j in range(2):
                if j == 0:
                    a(f"s_waitcnt lgkmcnt({8-b+min(idx,11)})")
                a(f"v_mfma_f32_16x16x32_bf16 {r4(acc(j,b))}, {r4(frZ(su,b))}, {r4(frW(su,j))}, {r4(acc(j,b))}")
                if idx < 11:
                    a(rl[idx])
                idx += 1
    for u in range(UNR):
        a(f"v_add_u32 v{vW1}, s36, v{bW1}")
        a(f"v_add_u32 v{vZ1}, s36, v{bZ1}")
        a(f"s_add_u32 s36, s36, {SLOT}")
        a(f"s_cmp_ge_u32 s36, {K2_LDS}")
        a("s_cselect_b32 s36, 0, s36")
        a(f"v_add_u32 v{vW0}, s36, v{bW0}")
        a(f"v_add_u32 v{vZ0}, s36, v{bZ0}")
        half(0, reads(1, vW1, vZ1))
        a("s_barrier")
        if u == 0:
            a("s_cmp_eq_u32 s37, 1")
            a(f"s_cbranch_scc1 {name}_z1")
            a.label(f"{name}_z1back")
        half(1, reads(0, vW0, vZ0))
    a("s_sub_u32 s37, s37, 1")
    a("s_cmp_lg_u32 s37, 0")
    a(f"s_cbranch_scc1 {name}_loop")
    st.mark(3)
    a("s_waitcnt vmcnt(0) lgkmcnt(0)")
    a("s_bitcmp1_b32 s27, 0")
    a(f"s_cbranch_scc1 {name}_epi1")
    for par in range(2):
        if par:
            a.label(f"{name}_epi1")
            a(f"v_xor_b32 v{vSt1}, 32, v{vSt1}")
        for j in range(2):
            for b in range(9):
                A = acc(j, b); P = FR + (j*9+b)*2; Z = Z1R + b*4 + j*2
                for h in range(2):
                    a(f"v_lshlrev_b32 v{vT0}, 16, v{Z+h}")
                    a(f"v_and_b32 v{vT1}, 0xffff0000, v{Z+h}")
                    a(f"v_pk_mul_f32 v[{A+2*h}:{A+2*h+1}], v[{A+2*h}:{A+2*h+1}], v[{vT0}:{vT1}]")
                    a(f"v_cvt_pk_bf16_f32 v{P+h}, v{A+2*h}, v{A+2*h+1}")
                single = (b == (0 if par else 8))
                if single:
                    pl = 0 if par else 4
                    a(f"s_add_u32 s34, s35, {pl*PLANE + j*1024}")
                    a(f"buffer_store_dwordx2 v[{P}:{P+1}], v{vSt1}, s[16:19], s34 offen{WT}")
                elif (b + par) % 2 == 1 - 0 and (b - par) % 2 == 1:
                    Q = P - 2
                    pl = (b + par) // 2
                    a(f"s_add_u32 s34, s35, {pl*PLANE + j*1024}")
                    swap_pair(a, Q)
                    a(f"buffer_store_dwordx4 v[{Q}:{Q+3}], v{vSt}, s[16:19], s34 offen{WT}")
        st.mark(4)
        if stamps:
            a("s_waitcnt vmcnt(0)")
        st.mark(5)
        st.markrt(7)
        st.dump(8, 29, vT0, vT1)
        a("s_endpgm")
    a.label(f"{name}_z1")
    for i in range(9):
        if i % 4 == 0 and i:
            a("s_add_u32 s31, s31, 4096")
        a(f"buffer_load_dwordx4 {r4(Z1R+4*i)}, v{vT3}, s[16:19], s31 offen offset:{(i%4)*1024}")
    a(f"s_branch {name}_z1back")
    a.label(f"{name}_loader")
    a(f"v_lshrrev_b32 v{vT0}, 3, v{vLane}")
    a(f"v_and_b32 v{vT1}, 7, v{vLane}")
    a(f"v_xor_b32 v{vT1}, v{vT1}, v{vT0}")
    a(f"v_lshlrev_b32 v{vT1}, 4, v{vT1}")
    a("s_lshl_b32 s31, s26, 7")
    a(f"v_add_u32 v{vT0}, s31, v{vT0}")
    LW = 196
    a(f"v_lshl_add_u32 v{LW}, v{vT0}, 12, v{vT1}")
    for p in range(1, 4):
        a(f"v_add_u32 v{LW+p}, {p*(32768-1024)}, v{LW}")
    a(f"v_lshlrev_b32 v{LW+4}, 4, v{vLane}")
    a(f"s_mul_i32 s32, s27, {32*18432}")
    a(f"s_add_u32 s32, s32, {WS_Z2T}")
    a("s_mov_b32 s36, 0")
    if pfw:
        a("s_cmp_eq_u32 s29, 6")
        a(f"s_cbranch_scc1 {name}_pfw")
    a("s_cmp_eq_u32 s29, 5")
    a(f"s_cbranch_scc1 {name}_loader1")
    for L in range(2):
        if L == 1:
            a.label(f"{name}_loader1")
        def issue():
            a("s_lshl_b32 s33, s30, 7")
            a("s_mul_i32 s34, s30, 18432")
            a("s_add_u32 s34, s34, s32")
            if L == 0:
                for g in range(4):
                    a(f"s_add_u32 m0, s36, {g*4096}")
                    if g:
                        a("s_add_u32 s33, s33, 131072")
                    else:
                        a("s_nop 0")
                    for p in range(4):
                        a(f"buffer_load_dwordx4 v{LW+p}, s[12:15], s33 offen offset:{p*1024} lds")
                a(f"s_add_u32 m0, s36, {16384+16384}")
                a("s_add_u32 s34, s34, 16384")
                a(f"buffer_load_dwordx4 v{LW+4}, s[16:19], s34 offen offset:1024 lds")
            else:
                for g in range(5):
                    a(f"s_add_u32 m0, s36, {16384+g*4096}")
                    if g:
                        a("s_add_u32 s34, s34, 4096")
                    else:
                        a("s_nop 0")
                    for p in range(4 if g < 4 else 1):
                        a(f"buffer_load_dwordx4 v{LW+4}, s[16:19], s34 offen offset:{p*1024} lds")
            a("s_add_u32 s30, s30, 1")
            a("s_and_b32 s30, s30, 31")
            a(f"s_add_u32 s36, s36, {SLOT}")
            a(f"s_cmp_ge_u32 s36, {K2_LDS}")
            a("s_cselect_b32 s36, 0, s36")
        issue()
        issue()
        a("s_waitcnt vmcnt(17)")
        a("s_barrier")
        issue()
        a("s_mov_b32 s37, 29")
        a.label(f"{name}_lloop{L}")
        a("s_waitcnt vmcnt(17)")
        a("s_barrier")
        issue()
        a("s_sub_u32 s37, s37, 1")
        a("s_cmp_lg_u32 s37, 0")
        a(f"s_cbranch_scc1 {name}_lloop{L}")
        if L == 0:
            a(f"s_branch {name}_ltail")
    a.label(f"{name}_ltail")
    nside = gen_side_loads(a, FR=0, vLane=vLane, vC=vC, vG=vG, vT=LW) if side else 0
    a(f"s_waitcnt vmcnt({17+nside})")
    a("s_barrier")
    a(f"s_waitcnt vmcnt({nside})")
    a("s_barrier")
    a("s_barrier")
    if side:
        gen_side_compute(a, name, FR=0, vSt=vSt, vSt1=vSt1)
    a.label(f"{name}_end")
    a("s_endpgm")
    if pfw:
        a.label(f"{name}_pfw")
        a("s_lshl_b32 s33, s28, 17")
        for p_ in range(4):
            a(f"v_add_u32 v{LW+p_}, s33, v{LW+p_}")
        a("s_add_u32 s30, s30, 3")
        issued = 3
        def pfi():
            a("s_and_b32 s30, s30, 31")
            a("s_lshl_b32 s33, s30, 7")
            for p_ in range(4):
                a(f"buffer_load_dwordx4 v[0:3], v{LW+p_}, s[12:15], s33 offen offset:{p_*1024}")
            a("s_add_u32 s30, s30, 1")
        for _ in range(pa):
            pfi(); issued += 1
        for sg in range(33):
            if sg % pb == 0:
                for q in range(pb):
                    if issued < 32:
                        pfi(); issued += 1
                a("s_waitcnt vmcnt(32)")
            if sg == 29:
                srd(a, 60, 56, FH*D*2)
                a("s_mul_i32 s33, s2, 11264")
                for i in range(11):
                    if i % 4 == 0 and i:
                        a("s_add_u32 s33, s33, 4096")
                    a(f"buffer_load_dwordx4 v[0:3], v{LW+4}, s[60:63], s33 offen offset:{(i%4)*1024}")
                srd(a, 60, 58, D*D*2)
                a("s_mul_i32 s33, s2, 3072")
                for i in range(3):
                    a(f"buffer_load_dwordx4 v[0:3], v{LW+4}, s[60:63], s33 offen offset:{i*1024}")
            a("s_barrier")
        a("s_endpgm")
    return NV

def _sKV(FR, t, f): return FR + (t*4+f)*4
def _sPQ(FR, t, j, k): return FR + 80 + (t*4+j*2+k)*4
def _sAC(FR, j, mat): return FR + 160 + (j*2+mat)*4
_sO = 176

def gen_side_loads(a, FR, vLane, vC, vG, vT):
    a("s_lshr_b32 s40, s2, 2")
    a("s_and_b32 s41, s2, 3")
    a("s_and_b32 s42, s41, 1")
    a("s_sub_u32 s43, s29, 4")
    a("s_lshl_b32 s44, s43, 2")
    a("s_add_u32 s44, s44, s42")
    a("s_mul_i32 s45, s41, 36864")
    a(f"s_add_u32 s45, s45, {WS_KVF}")
    a(f"s_mul_i32 s46, s41, {5*PLANE}")
    a("s_lshl_b32 s47, s40, 11")
    a("s_add_u32 s46, s46, s47")
    a(f"s_add_u32 s46, s46, {WS_PQ}")
    a(f"v_lshlrev_b32 v{vT}, 4, v{vLane}")
    a(f"v_lshlrev_b32 v{vT+1}, 6, v{vC}")
    a(f"v_lshl_add_u32 v{vT+1}, v{vG}, 4, v{vT+1}")
    tab = 0
    for b in range(9):
        tab |= PB[b] << (2*b)
    n = 0
    for t in range(5):
        if t == 4:
            a("s_cmp_eq_u32 s42, 0")
            a("s_cselect_b32 s48, 8, 0")
        else:
            a(f"s_add_u32 s48, s44, {t}")
        a("s_lshl_b32 s49, s48, 12")
        a("s_add_u32 s49, s49, s45")
        for f in range(4):
            a(f"buffer_load_dwordx4 {r4(_sKV(FR,t,f))}, v{vT}, s[16:19], s49 offen offset:{f*1024}")
        a("s_lshl_b32 s50, s48, 1")
        a(f"s_lshr_b32 s50, {tab:#x}, s50")
        a("s_and_b32 s50, s50, 3")
        a(f"s_mul_i32 s50, s50, {PLANE}")
        a("s_add_u32 s50, s50, s46")
        for k in range(2):
            for j in range(2):
                a(f"buffer_load_dwordx4 {r4(_sPQ(FR,t,j,k))}, v{vT+1}, s[16:19], s50 offen offset:{j*1024}")
            if k == 0:
                a(f"s_add_u32 s50, s50, {PLANE}")
        n += 8
    return n

def gen_side_compute(a, name, FR, vSt, vSt1):
    a("s_mul_i32 s51, s41, 9")
    a("s_lshr_b32 s51, s51, 1")
    a("s_add_u32 s51, s51, 72")
    a(f"s_mul_i32 s51, s51, {PLANE}")
    a("s_add_u32 s51, s51, s47")
    a(f"s_add_u32 s51, s51, {WS_HO}")
    a("s_lshl_b32 s52, s43, 1")
    a("s_add_u32 s52, s52, s42")
    a(f"s_mul_i32 s52, s52, {PLANE}")
    a("s_add_u32 s52, s52, s51")
    a("s_mov_b32 s53, 0x358637bd")
    for t in range(5):
        if t == 4:
            a("s_cmp_lg_u32 s43, 0")
            a(f"s_cbranch_scc1 {name}_end")
        a(f"s_waitcnt vmcnt({(4-t)*8 + (2 if t in (2,3) else 0) + (4 if t == 4 else 0) - (0)})")
        for j in range(2):
            for mat in range(2):
                A = _sAC(FR, j, mat)
                a(f"v_mfma_f32_16x16x32_bf16 {r4(A)}, {r4(_sKV(FR,t,mat*2))}, {r4(_sPQ(FR,t,j,0))}, 0")
        for j in range(2):
            for mat in range(2):
                A = _sAC(FR, j, mat)
                a(f"v_mfma_f32_16x16x32_bf16 {r4(A)}, {r4(_sKV(FR,t,mat*2+1))}, {r4(_sPQ(FR,t,j,1))}, {r4(A)}")
        a("s_nop 7")
        for j in range(2):
            A = _sAC(FR, j, 0); Dn = _sAC(FR, j, 1)
            P = _sO + j*4 + (t % 2)*2 + (8 if t >= 2 else 0) + (8 if t >= 4 else 0)
            if j == 1:
                pass
            for r in range(4):
                a(f"v_add_f32 v{Dn+r}, s53, v{Dn+r}")
            for r in range(4):
                a(f"v_rcp_f32 v{Dn+r}, v{Dn+r}")
            a("s_nop 0")
            for r in range(4):
                a(f"v_mul_f32 v{A+r}, v{A+r}, v{Dn+r}")
            a(f"v_cvt_pk_bf16_f32 v{P}, v{A}, v{A+1}")
            a(f"v_cvt_pk_bf16_f32 v{P+1}, v{A+2}, v{A+3}")
        if t in (1, 3):
            for j in range(2):
                Q = _sO + j*4 + (8 if t >= 2 else 0)
                swap_pair(a, Q)
                a(f"buffer_store_dwordx4 v[{Q}:{Q+3}], v{vSt}, s[16:19], s52 offen offset:{j*1024}{WT}")
            a(f"s_add_u32 s52, s52, {PLANE}")
        if t == 4:
            a("s_lshl_b32 s54, s42, 5")
            a(f"v_xor_b32 v{vSt1}, s54, v{vSt1}")
            a("s_cmp_eq_u32 s42, 0")
            a(f"s_cselect_b32 s54, {4*PLANE}, 0")
            a("s_add_u32 s54, s54, s51")
            for j in range(2):
                P = _sO + 16 + j*4
                a(f"buffer_store_dwordx2 v[{P}:{P+1}], v{vSt1}, s[16:19], s54 offen offset:{j*1024}{WT}")
```

```python
import build
build.build(["k1","k2","k3"], "v_1.s", stamps=True, k2=dict(pfw=False))
build.build(["k1","k2","k3"], "v_2.s", stamps=True, k1=dict(pf2=False), k2=dict(pfw=False))
build.build(["k1","k2","k3"], "h_a.s", k2=dict(pfw=False))
build.build(["k1","k2","k3"], "h_b.s", k1=dict(pf2=False), k2=dict(pfw=False))
build.build(["k1","k2","k3"], "h_c.s", k1=dict(wpf=False), k2=dict(pfw=False))
```

```python
import sys
from asmlib import *
from layout import *
import k2, importlib
HEAD = open("parallel_sum__linear_attn_block__mixer_gmlp__prompt.s.ref").read().split("; Override")[0]
def build(kernels, out, stamps=False, **kw):
    a = Asm()
    a.raw(HEAD.rstrip())
    descs = []
    k2thr = 448 if kw.get('k2', {}).get('pfw', False) else 384
    body = Asm()
    for kn in kernels:
        if kn == "k2":
            k2 = importlib.import_module(kw.get("k2mod", "k2"))
            nv = k2.gen_k2(body, "k2_kernel", stamps=stamps, **kw.get("k2", {}))
            a.raw(f"; @launch kernel=k2_kernel grid=(256,1,1) block=({k2thr},1,1) lds={k2.K2_LDS}")
            descs.append(kernel_desc("k2_kernel", nv, 102 if stamps else 80, (nv+3)//4*4))
        elif kn == "k3":
            import k3
            nv = k3.gen_k3(body, "k3_kernel", stamps=stamps, **kw.get("k3", {}))
            a.raw(f"; @launch kernel=k3_kernel grid=(240,1,1) block=(384,1,1) lds={k3.K3_LDS}")
            descs.append(kernel_desc("k3_kernel", nv, 102 if stamps else 64, (nv+3)//4*4))
        elif kn == "k1":
            import k1
            nv = k1.gen_k1(body, "k1_kernel", stamps=stamps, **kw.get("k1", {}))
            a.raw(f"; @launch kernel=k1_kernel grid=(256,1,1) block=(512,1,1) lds={k1.K1_LDS}")
            descs.append(kernel_desc("k1_kernel", nv, 102, (nv+3)//4*4))
    a.raw('.amdgcn_target "amdgcn-amd-amdhsa--gfx950"')
    a.raw(".text")
    a.lines += body.lines
    a.raw("code_end:")
    a.raw('.section .rodata,"a"')
    for d in descs:
        a.raw(".p2align 6")
        a.raw(d)
    open(out, "w").write(a.text())
if __name__ == "__main__":
    build(sys.argv[2].split(","), sys.argv[1], stamps=(len(sys.argv) > 3))
```

```python
import struct
from asmlib import *
from layout import *
WT = " sc1"
OOBV = 0x7f000000

SLOT = 28672
NSLOT = 4
OWN0 = SLOT * NSLOT
OSLOT = 6144
NOWN = 8
K2_LDS = OWN0 + OSLOT * NOWN

def r4(x): return f"v[{x}:{x+3}]"

def swap_pair(a, Q):
    a("s_nop 1")
    a(f"v_permlane32_swap_b32 v{Q}, v{Q+2}")
    a(f"v_permlane32_swap_b32 v{Q+1}, v{Q+3}")
    a("s_nop 0")
    a(f"v_permlane16_swap_b32 v{Q}, v{Q+2}")
    a(f"v_permlane16_swap_b32 v{Q+1}, v{Q+3}")

def gen_k2(a, name="k2_kernel", side=True, stamps=False, UNR=2, pfw=False, pb=4, pa=2):
    st = Stamps(a, stamps, 1)
    ACC = 0
    FR = 72
    Z1R = 160
    vW0, vW1, vZ0, vZ1 = 196, 197, 198, 199
    b0, b1, vO0, vO1 = 200, 201, 202, 203
    vT0, vT1, vT2, vT3 = 204, 205, 206, 207
    vLane, vC, vG = 208, 209, 210
    vSt, vSt1 = 211, 212
    vBias0, vBias1 = 214, 215
    NV = 216
    def acc(j, b): return ACC + (j*9+b)*4
    def frW(s, j): return FR + s*44 + j*4
    def frZ(s, b): return FR + s*44 + 8 + b*4
    kernel_header(a, name)
    a("s_cmp_ge_u32 s2, 256")
    a(f"s_cbranch_scc1 {name}_end")
    st.mark(0)
    st.markrt(6)
    a("s_load_dwordx4 s[4:7], s[0:1], 40")
    a("s_load_dwordx2 s[8:9], s[0:1], 80")
    a("s_load_dwordx2 s[56:57], s[0:1], 56")
    a("s_load_dwordx2 s[58:59], s[0:1], 16")
    a(f"v_lshrrev_b32 v{vT0}, 6, v0")
    a(f"v_and_b32 v{vLane}, 63, v0")
    a(f"v_readfirstlane_b32 s29, v{vT0}")
    a("s_and_b32 s24, s2, 7")
    a("s_lshr_b32 s25, s2, 3")
    a("s_and_b32 s26, s24, 1")
    a("s_lshl_b32 s26, s26, 3")
    a("s_and_b32 s27, s25, 7")
    a("s_add_u32 s26, s26, s27")
    a("s_lshr_b32 s27, s24, 1")
    a("s_lshl_b32 s27, s27, 2")
    a("s_lshr_b32 s28, s25, 3")
    a("s_add_u32 s27, s27, s28")
    a("s_lshl_b32 s30, s24, 2")
    a(f"v_and_b32 v{vC}, 15, v{vLane}")
    a(f"v_lshrrev_b32 v{vG}, 4, v{vLane}")
    a(f"v_lshrrev_b32 v{vT0}, 2, v{vC}")
    a(f"v_sub_u32 v{vT0}, 0, v{vT0}")
    a(f"v_and_b32 v{vT0}, 3, v{vT0}")
    a(f"v_xor_b32 v{vT1}, v{vT0}, v{vG}")
    a(f"v_lshlrev_b32 v{vT1}, 4, v{vT1}")
    a(f"v_lshl_add_u32 v{vSt}, v{vC}, 6, v{vT1}")
    a(f"v_lshrrev_b32 v{vT1}, 1, v{vG}")
    a(f"v_xor_b32 v{vT1}, v{vT0}, v{vT1}")
    a(f"v_lshlrev_b32 v{vT1}, 4, v{vT1}")
    a(f"v_lshl_add_u32 v{vSt1}, v{vC}, 6, v{vT1}")
    a(f"v_and_b32 v{vT1}, 1, v{vG}")
    a(f"v_lshl_add_u32 v{vSt1}, v{vT1}, 3, v{vSt1}")
    a("s_waitcnt lgkmcnt(0)")
    srd(a, 12, 4, S*S*2)
    srd(a, 16, 8, WS_END)
    srd(a, 20, 6, S*2)
    a("s_cmp_ge_u32 s29, 4")
    a(f"s_cbranch_scc1 {name}_loader")
    a("s_lshl_b32 s32, s26, 7")
    a("s_lshl_b32 s33, s29, 5")
    a("s_add_u32 s32, s32, s33")
    a(f"v_add_u32 v{vT1}, s32, v{vC}")
    a(f"v_lshlrev_b32 v{vT2}, 1, v{vT1}")
    a(f"buffer_load_ushort v{vBias0}, v{vT2}, s[20:23], 0 offen")
    a(f"buffer_load_ushort v{vBias1}, v{vT2}, s[20:23], 0 offen offset:32")
    a("s_lshl_b32 s31, s26, 4")
    a("s_add_u32 s31, s31, s27")
    a("s_lshl_b32 s31, s31, 2")
    a("s_add_u32 s31, s31, s29")
    a("s_mul_i32 s31, s31, 9216")
    a(f"s_add_u32 s31, s31, {WS_Z1}")
    a("s_mul_i32 s35, s27, 9")
    a("s_lshr_b32 s35, s35, 1")
    a(f"s_mul_i32 s35, s35, {PLANE}")
    a("s_lshl_b32 s33, s32, 6")
    a("s_add_u32 s35, s35, s33")
    a(f"s_add_u32 s35, s35, {WS_HO}")
    a(f"v_and_b32 v{vT0}, 7, v{vC}")
    a(f"v_xor_b32 v{vT0}, v{vT0}, v{vG}")
    a(f"v_lshlrev_b32 v{vT0}, 4, v{vT0}")
    a(f"v_lshl_add_u32 v{vT0}, v{vC}, 7, v{vT0}")
    a(f"v_xor_b32 v{vT2}, 64, v{vT0}")
    a(f"v_mov_b32 v{b0}, v{vT0}")
    a(f"v_mov_b32 v{b1}, v{vT2}")
    a(f"v_lshlrev_b32 v{vT3}, 4, v{vLane}")
    a("s_cmp_gt_u32 s29, s28")
    a("s_cselect_b32 s33, 1, 0")
    a("s_sub_u32 s33, s29, s33")
    a("s_lshl_b32 s33, s33, 12")
    a(f"s_add_u32 s34, s33, {OWN0}")
    a("s_cmp_eq_u32 s29, s28")
    a(f"s_cselect_b32 s40, {OWN0}, s33")
    a(f"s_cselect_b32 s42, {K2_LDS}, s34")
    a(f"s_movk_i32 s33, {SLOT}")
    a(f"s_cselect_b32 s41, {OSLOT}, s33")
    a("s_mov_b32 s43, s40")
    a("s_mov_b32 s36, 12288")
    a(f"s_mov_b32 s44, {OWN0+4096}")
    a("s_waitcnt vmcnt(0)")
    a(f"v_lshlrev_b32 v{vBias0}, 16, v{vBias0}")
    a(f"v_lshlrev_b32 v{vBias1}, 16, v{vBias1}")
    ik = hex(struct.unpack("<I", struct.pack("<f", 1.0/GK))[0])
    a(f"v_mul_f32 v{vBias0}, {ik}, v{vBias0}")
    a(f"v_mul_f32 v{vBias1}, {ik}, v{vBias1}")
    for j in range(2):
        for i in range(36):
            a(f"v_mov_b32 v{ACC+j*36+i}, v{vBias0+j}")
    a(f"v_add_u32 v{vW0}, s43, v{b0}")
    a(f"v_add_u32 v{vZ0}, s36, v{b0}")
    a(f"v_add_u32 v{vO0}, s44, v{b0}")
    a(f"s_mov_b32 s37, {32//UNR}")
    a("s_and_b32 s45, s25, 7")
    for u in range(1, 8):
        a(f"s_cmp_eq_u32 s45, {u}")
        a(f"s_cbranch_scc1 {name}_var{u}")
    for u in range(8):
        if u:
            a.label(f"{name}_var{u}")
        def reads(s_, vW, vZ, vO):
            L = [f"ds_read_b128 {r4(frW(s_,j))}, v{vW} offset:{j*2048}" for j in range(2)]
            for b in range(9):
                if b == u:
                    L.append(f"ds_read_b128 {r4(frZ(s_,b))}, v{vO}")
                else:
                    L.append(f"ds_read_b128 {r4(frZ(s_,b))}, v{vZ} offset:{(b - (b > u))*2048}")
            return L
        def half(su, rl, extra=()):
            idx = 0
            extra = list(extra)
            for b in range(9):
                for j in range(2):
                    if j == 0:
                        a(f"s_waitcnt lgkmcnt({8-b+min(idx,11)})")
                    a(f"v_mfma_f32_16x16x32_bf16 {r4(acc(j,b))}, {r4(frZ(su,b))}, {r4(frW(su,j))}, {r4(acc(j,b))}")
                    if idx < 11:
                        a(rl[idx])
                    elif extra:
                        for x in extra.pop(0):
                            a(x)
                    idx += 1
            assert not extra
        st.mark(1)
        a("s_barrier")
        st.mark(2)
        for r in reads(0, vW0, vZ0, vO0):
            a(r)
        a(f"v_add_u32 v{vW1}, s43, v{b1}")
        a(f"v_add_u32 v{vZ1}, s36, v{b1}")
        a(f"v_add_u32 v{vO1}, s44, v{b1}")
        a.raw(".p2align 6")
        a.label(f"{name}_loop{u}")
        adv = [["s_add_u32 s43, s43, s41", "s_cmp_ge_u32 s43, s42", "s_cselect_b32 s43, s40, s43"],
               [f"s_add_u32 s36, s36, {SLOT}", f"s_cmp_ge_u32 s36, {OWN0}", "s_cselect_b32 s36, 12288, s36"],
               [f"s_add_u32 s44, s44, {OSLOT}", f"s_cmp_ge_u32 s44, {K2_LDS}", f"s_cselect_b32 s44, {OWN0+4096}, s44"],
               [f"v_add_u32 v{vW0}, s43, v{b0}"], [f"v_add_u32 v{vZ0}, s36, v{b0}"], [f"v_add_u32 v{vO0}, s44, v{b0}"]]
        nxt = [[f"v_add_u32 v{vW1}, s43, v{b1}"], [f"v_add_u32 v{vZ1}, s36, v{b1}"], [f"v_add_u32 v{vO1}, s44, v{b1}"]]
        for uu in range(UNR):
            half(0, reads(1, vW1, vZ1, vO1), adv)
            a("s_barrier")
            if uu == 0:
                a(f"s_cmp_eq_u32 s37, {max(1, 4//UNR)}")
                a(f"s_cbranch_scc1 {name}_z1_{u}")
                a.label(f"{name}_z1back{u}")
            half(1, reads(0, vW0, vZ0, vO0), nxt)
        a("s_sub_u32 s37, s37, 1")
        a("s_cmp_lg_u32 s37, 0")
        a(f"s_cbranch_scc1 {name}_loop{u}")
        if u < 7:
            a(f"s_branch {name}_epi")
    a.label(f"{name}_epi")
    st.mark(3)
    a("s_waitcnt vmcnt(0) lgkmcnt(0)")
    a("s_bitcmp1_b32 s27, 0")
    a(f"s_cbranch_scc1 {name}_epi1")
    for par in range(2):
        if par:
            a.label(f"{name}_epi1")
            a(f"v_xor_b32 v{vSt1}, 32, v{vSt1}")
        for j in range(2):
            for b in range(9):
                A = acc(j, b); P = FR + (j*9+b)*2; Z = Z1R + b*4 + j*2
                for h in range(2):
                    a(f"v_lshlrev_b32 v{vT0}, 16, v{Z+h}")
                    a(f"v_and_b32 v{vT1}, 0xffff0000, v{Z+h}")
                    a(f"v_pk_mul_f32 v[{A+2*h}:{A+2*h+1}], v[{A+2*h}:{A+2*h+1}], v[{vT0}:{vT1}]")
                    a(f"v_cvt_pk_bf16_f32 v{P+h}, v{A+2*h}, v{A+2*h+1}")
                single = (b == (0 if par else 8))
                if single:
                    pl = 0 if par else 4
                    a(f"s_add_u32 s34, s35, {pl*PLANE + j*1024}")
                    a(f"buffer_store_dwordx2 v[{P}:{P+1}], v{vSt1}, s[16:19], s34 offen{WT}")
                elif (b + par) % 2 == 1 - 0 and (b - par) % 2 == 1:
                    Q = P - 2
                    pl = (b + par) // 2
                    a(f"s_add_u32 s34, s35, {pl*PLANE + j*1024}")
                    swap_pair(a, Q)
                    a(f"buffer_store_dwordx4 v[{Q}:{Q+3}], v{vSt}, s[16:19], s34 offen{WT}")
        st.mark(4)
        if stamps:
            a("s_waitcnt vmcnt(0)")
        st.mark(5)
        st.markrt(7)
        st.dump(8, 29, vT0, vT1)
        a("s_endpgm")
    for u in range(8):
        a.label(f"{name}_z1_{u}")
        for i in range(9):
            if i % 4 == 0 and i:
                a("s_add_u32 s31, s31, 4096")
            a(f"buffer_load_dwordx4 {r4(Z1R+4*i)}, v{vT3}, s[16:19], s31 offen offset:{(i%4)*1024}")
        a(f"s_branch {name}_z1back{u}")
    a.label(f"{name}_loader")
    a(f"v_lshrrev_b32 v{vT0}, 3, v{vLane}")
    a(f"v_and_b32 v{vT1}, 7, v{vLane}")
    a(f"v_xor_b32 v{vT1}, v{vT1}, v{vT0}")
    a(f"v_lshlrev_b32 v{vT1}, 4, v{vT1}")
    a("s_lshl_b32 s31, s26, 7")
    a(f"v_add_u32 v{vT0}, s31, v{vT0}")
    LW = 196
    a(f"v_lshl_add_u32 v{LW}, v{vT0}, 12, v{vT1}")
    for p in range(1, 4):
        a(f"v_add_u32 v{LW+p}, {p*(32768-1024)}, v{LW}")
    a(f"v_lshlrev_b32 v{LW+4}, 4, v{vLane}")
    a(f"s_mul_i32 s32, s27, {32*18432}")
    a(f"s_add_u32 s32, s32, {WS_Z2T}")
    a("s_mov_b32 s36, 0")
    a(f"s_mov_b32 s38, {OWN0}")
    a("s_mov_b32 s39, s30")
    a("s_and_b32 s45, s25, 7")
    for g in range(3):
        a(f"s_cmp_le_u32 s28, {g}")
        a(f"s_cselect_b32 s{60+g}, 131072, 0")
        if g:
            a(f"s_add_u32 s{60+g}, s{60+g}, {g*131072}")
    a("s_lshl_b32 s63, s28, 17")
    for p_ in range(8):
        a(f"s_cmp_le_u32 s45, {p_}")
        a(f"s_cselect_b32 s{64+p_}, 2048, 0")
        a(f"s_add_u32 s{64+p_}, s{64+p_}, {(p_ & ~1)*2048}")
    a("s_lshr_b32 s73, s45, 2")
    a("s_and_b32 s74, s45, 3")
    a("s_mov_b32 s75, 0")
    a("s_lshl_b32 s72, s45, 11")
    a("s_cmp_eq_u32 s29, 5")
    a(f"s_cbranch_scc1 {name}_loader1")
    for L in range(2):
        if L == 1:
            a.label(f"{name}_loader1")
        def zsrc():
            a("s_mul_i32 s34, s30, 18432")
            a("s_add_u32 s34, s34, s32")
        def zpos(p_):
            a(f"s_add_u32 s35, s34, s{64+p_}")
            for q in range(2):
                a(f"buffer_load_dwordx4 v{LW+4}, s[16:19], s35 offen offset:{(p_&1)*2048 + q*1024} lds")
        def issue():
            zsrc()
            if L == 0:
                a("s_lshl_b32 s33, s30, 7")
                for g in range(3):
                    a(f"s_add_u32 m0, s36, {g*4096}")
                    a(f"s_add_u32 s35, s33, s{60+g}")
                    for p_ in range(4):
                        a(f"buffer_load_dwordx4 v{LW+p_}, s[12:15], s35 offen offset:{p_*1024} lds")
                a(f"s_add_u32 m0, s36, 12288")
                zpos(0)
            else:
                for p_ in range(1, 8):
                    if p_ == 1 or p_ % 2 == 0:
                        a(f"s_add_u32 m0, s36, {12288 + (p_ & ~1)*2048}")
                    zpos(p_)
            a("s_add_u32 s30, s30, 1")
            a("s_and_b32 s30, s30, 31")
            a(f"s_add_u32 s36, s36, {SLOT}")
            a(f"s_cmp_ge_u32 s36, {OWN0}")
            a("s_cselect_b32 s36, 0, s36")
        def own(nst=4, head=True):
            if L == 1 and head:
                a("s_add_u32 s33, s39, s74")
                a("s_and_b32 s33, s33, 31")
                a("s_mul_i32 s33, s33, 18432")
                a("s_add_u32 s33, s33, s32")
                a("s_add_u32 s33, s33, 16384")
                a("s_cmp_eq_u32 s75, s73")
                a(f"s_cselect_b32 s33, s33, {OOBV}")
                a("s_xor_b32 s75, s75, 1")
                for q in range(2):
                    a(f"buffer_load_dwordx4 v[0:3], v{LW+4}, s[16:19], s33 offen offset:{q*1024}")
            for _ in range(nst):
                if L == 0:
                    a("s_lshl_b32 s33, s39, 7")
                    a("s_mov_b32 m0, s38")
                    a("s_add_u32 s35, s33, s63")
                    for p_ in range(4):
                        a(f"buffer_load_dwordx4 v{LW+p_}, s[12:15], s35 offen offset:{p_*1024} lds")
                else:
                    a("s_mul_i32 s33, s39, 18432")
                    a("s_add_u32 m0, s38, 4096")
                    a("s_add_u32 s33, s33, s32")
                    a("s_add_u32 s35, s33, s72")
                    for q in range(2):
                        a(f"buffer_load_dwordx4 v{LW+4}, s[16:19], s35 offen offset:{q*1024} lds")
                a("s_add_u32 s39, s39, 1")
                a("s_and_b32 s39, s39, 31")
                a(f"s_add_u32 s38, s38, {OSLOT}")
                a(f"s_cmp_ge_u32 s38, {K2_LDS}")
                a(f"s_cselect_b32 s38, {OWN0}, s38")
        NO = 16 if L == 0 else 10
        O1 = 4 if L == 0 else 2
        issue()
        own(1, False)
        issue()
        own(1, False)
        a(f"s_waitcnt vmcnt({14+O1})")
        a("s_barrier")
        own(2, False)
        a("s_xor_b32 s75, s75, 1")
        issue()
        a(f"s_waitcnt vmcnt({14+2*O1})")
        a("s_barrier")
        issue()
        own()
        for r in range(1, 4):
            a(f"s_waitcnt vmcnt({14 + (NO if r in (1, 2) else 0)})")
            a("s_barrier")
            issue()
        a("s_mov_b32 s37, 6")
        a.label(f"{name}_lloop{L}")
        for r in range(4):
            a(f"s_waitcnt vmcnt({14 + (NO if r in (1, 2) else 0)})")
            a("s_barrier")
            issue()
            if r == 0:
                own()
        a("s_sub_u32 s37, s37, 1")
        a("s_cmp_lg_u32 s37, 0")
        a(f"s_cbranch_scc1 {name}_lloop{L}")
        a("s_waitcnt vmcnt(14)")
        a("s_barrier")
        issue()
        if L == 0:
            a(f"s_branch {name}_ltail")
    a.label(f"{name}_ltail")
    sl = Asm()
    nside = gen_side_loads(sl, FR=0, vLane=vLane, vC=vC, vG=vG, vT=LW)
    n = 0
    for l in sl.lines:
        a.raw(l)
        if "buffer_load" in l:
            n += 1
            if n == 8:
                a(f"s_waitcnt vmcnt({14+n})")
                a("s_barrier")
            if n == 24:
                a(f"s_waitcnt vmcnt({n})")
                a("s_barrier")
    a("s_barrier")
    if side:
        gen_side_compute(a, name, FR=0, vSt=vSt, vSt1=vSt1)
    a.label(f"{name}_end")
    a("s_endpgm")
    if pfw:
        a.label(f"{name}_pfw")
        a("s_lshl_b32 s33, s28, 17")
        for p_ in range(4):
            a(f"v_add_u32 v{LW+p_}, s33, v{LW+p_}")
        a("s_add_u32 s30, s30, 3")
        issued = 3
        def pfi():
            a("s_and_b32 s30, s30, 31")
            a("s_lshl_b32 s33, s30, 7")
            for p_ in range(4):
                a(f"buffer_load_dwordx4 v[0:3], v{LW+p_}, s[12:15], s33 offen offset:{p_*1024}")
            a("s_add_u32 s30, s30, 1")
        for _ in range(pa):
            pfi(); issued += 1
        for sg in range(33):
            if sg % pb == 0:
                for q in range(pb):
                    if issued < 32:
                        pfi(); issued += 1
                a("s_waitcnt vmcnt(32)")
            if sg == 29:
                srd(a, 60, 56, FH*D*2)
                a("s_mul_i32 s33, s2, 11264")
                for i in range(11):
                    if i % 4 == 0 and i:
                        a("s_add_u32 s33, s33, 4096")
                    a(f"buffer_load_dwordx4 v[0:3], v{LW+4}, s[60:63], s33 offen offset:{(i%4)*1024}")
                srd(a, 60, 58, D*D*2)
                a("s_mul_i32 s33, s2, 3072")
                for i in range(3):
                    a(f"buffer_load_dwordx4 v[0:3], v{LW+4}, s[60:63], s33 offen offset:{i*1024}")
            a("s_barrier")
        a("s_endpgm")
    return NV

def _sKV(FR, t, f): return FR + (t*4+f)*4
def _sPQ(FR, t, j, k): return FR + 80 + (t*4+j*2+k)*4
def _sAC(FR, j, mat): return FR + 160 + (j*2+mat)*4
_sO = 176

def gen_side_loads(a, FR, vLane, vC, vG, vT):
    a("s_lshr_b32 s40, s2, 2")
    a("s_and_b32 s41, s2, 3")
    a("s_and_b32 s42, s41, 1")
    a("s_sub_u32 s43, s29, 4")
    a("s_lshl_b32 s44, s43, 2")
    a("s_add_u32 s44, s44, s42")
    a("s_mul_i32 s45, s41, 36864")
    a(f"s_add_u32 s45, s45, {WS_KVF}")
    a(f"s_mul_i32 s46, s41, {5*PLANE}")
    a("s_lshl_b32 s47, s40, 11")
    a("s_add_u32 s46, s46, s47")
    a(f"s_add_u32 s46, s46, {WS_PQ}")
    a(f"v_lshlrev_b32 v{vT}, 4, v{vLane}")
    a(f"v_lshlrev_b32 v{vT+1}, 6, v{vC}")
    a(f"v_lshl_add_u32 v{vT+1}, v{vG}, 4, v{vT+1}")
    tab = 0
    for b in range(9):
        tab |= PB[b] << (2*b)
    n = 0
    for t in range(5):
        if t == 4:
            a("s_cmp_eq_u32 s42, 0")
            a("s_cselect_b32 s48, 8, 0")
        else:
            a(f"s_add_u32 s48, s44, {t}")
        a("s_lshl_b32 s49, s48, 12")
        a("s_add_u32 s49, s49, s45")
        for f in range(4):
            a(f"buffer_load_dwordx4 {r4(_sKV(FR,t,f))}, v{vT}, s[16:19], s49 offen offset:{f*1024}")
        a("s_lshl_b32 s50, s48, 1")
        a(f"s_lshr_b32 s50, {tab:#x}, s50")
        a("s_and_b32 s50, s50, 3")
        a(f"s_mul_i32 s50, s50, {PLANE}")
        a("s_add_u32 s50, s50, s46")
        for k in range(2):
            for j in range(2):
                a(f"buffer_load_dwordx4 {r4(_sPQ(FR,t,j,k))}, v{vT+1}, s[16:19], s50 offen offset:{j*1024}")
            if k == 0:
                a(f"s_add_u32 s50, s50, {PLANE}")
        n += 8
    return n

def gen_side_compute(a, name, FR, vSt, vSt1):
    a("s_mul_i32 s51, s41, 9")
    a("s_lshr_b32 s51, s51, 1")
    a("s_add_u32 s51, s51, 72")
    a(f"s_mul_i32 s51, s51, {PLANE}")
    a("s_add_u32 s51, s51, s47")
    a(f"s_add_u32 s51, s51, {WS_HO}")
    a("s_lshl_b32 s52, s43, 1")
    a("s_add_u32 s52, s52, s42")
    a(f"s_mul_i32 s52, s52, {PLANE}")
    a("s_add_u32 s52, s52, s51")
    a("s_mov_b32 s53, 0x358637bd")
    for t in range(5):
        if t == 4:
            a("s_cmp_lg_u32 s43, 0")
            a(f"s_cbranch_scc1 {name}_end")
        a(f"s_waitcnt vmcnt({(4-t)*8 + (2 if t in (2,3) else 0) + (4 if t == 4 else 0) - (0)})")
        for j in range(2):
            for mat in range(2):
                A = _sAC(FR, j, mat)
                a(f"v_mfma_f32_16x16x32_bf16 {r4(A)}, {r4(_sKV(FR,t,mat*2))}, {r4(_sPQ(FR,t,j,0))}, 0")
        for j in range(2):
            for mat in range(2):
                A = _sAC(FR, j, mat)
                a(f"v_mfma_f32_16x16x32_bf16 {r4(A)}, {r4(_sKV(FR,t,mat*2+1))}, {r4(_sPQ(FR,t,j,1))}, {r4(A)}")
        a("s_nop 7")
        for j in range(2):
            A = _sAC(FR, j, 0); Dn = _sAC(FR, j, 1)
            P = _sO + j*4 + (t % 2)*2 + (8 if t >= 2 else 0) + (8 if t >= 4 else 0)
            if j == 1:
                pass
            for r in range(4):
                a(f"v_add_f32 v{Dn+r}, s53, v{Dn+r}")
            for r in range(4):
                a(f"v_rcp_f32 v{Dn+r}, v{Dn+r}")
            a("s_nop 0")
            for r in range(4):
                a(f"v_mul_f32 v{A+r}, v{A+r}, v{Dn+r}")
            a(f"v_cvt_pk_bf16_f32 v{P}, v{A}, v{A+1}")
            a(f"v_cvt_pk_bf16_f32 v{P+1}, v{A+2}, v{A+3}")
        if t in (1, 3):
            for j in range(2):
                Q = _sO + j*4 + (8 if t >= 2 else 0)
                swap_pair(a, Q)
                a(f"buffer_store_dwordx4 v[{Q}:{Q+3}], v{vSt}, s[16:19], s52 offen offset:{j*1024}{WT}")
            a(f"s_add_u32 s52, s52, {PLANE}")
        if t == 4:
            a("s_lshl_b32 s54, s42, 5")
            a(f"v_xor_b32 v{vSt1}, s54, v{vSt1}")
            a("s_cmp_eq_u32 s42, 0")
            a(f"s_cselect_b32 s54, {4*PLANE}, 0")
            a("s_add_u32 s54, s54, s51")
            for j in range(2):
                P = _sO + 16 + j*4
                a(f"buffer_store_dwordx2 v[{P}:{P+1}], v{vSt1}, s[16:19], s54 offen offset:{j*1024}{WT}")
```

```python
from asmlib import *
from layout import *
WT = " sc1"

SLOT = 18432
NSLOT = 6
K3_LDS = SLOT * NSLOT + 2048
NST = 45

def gen_k3(a, name="k3_kernel", stamps=False, UNR=5):
    st = Stamps(a, stamps, 2)
    ACC = 0
    FR = 24
    XR = 64
    vA, vWa, vWb = 76, 77, 78
    bA, bWa, bWb = 79, 80, 81
    vT0, vT1, vT2, vT3 = 82, 83, 84, 85
    vLane, vC, vG, vSt = 86, 87, 88, 89
    vA1, vWa1, vWb1 = 90, 91, 92
    NV = 96
    def acc(i, bb): return ACC + (i*2+bb)*4
    def frA(s, i): return FR + s*20 + i*4
    def frW(s, bb): return FR + s*20 + 12 + bb*4
    def r4(x): return f"v[{x}:{x+3}]"
    kernel_header(a, name)
    a("s_cmp_ge_u32 s2, 240")
    a(f"s_cbranch_scc1 {name}_end")
    st.mark(0)
    st.markrt(6)
    a("s_and_b32 s24, s2, 7")
    a("s_lshr_b32 s25, s2, 3")
    a("s_mul_i32 s26, s24, 30")
    a("s_add_u32 s26, s26, s25")
    a("s_cmp_ge_u32 s26, 234")
    a(f"s_cbranch_scc1 {name}_end")
    a("s_load_dwordx2 s[4:5], s[0:1], 0")
    a("s_load_dwordx2 s[6:7], s[0:1], 16")
    a("s_load_dwordx4 s[8:11], s[0:1], 56")
    a("s_load_dwordx2 s[40:41], s[0:1], 80")
    a(f"v_lshrrev_b32 v{vT0}, 6, v0")
    a(f"v_and_b32 v{vLane}, 63, v0")
    a(f"v_readfirstlane_b32 s29, v{vT0}")
    a(f"s_mul_hi_u32 s27, s26, {(2**32 + 8)//9}")
    a("s_mul_i32 s28, s27, 9")
    a("s_sub_u32 s28, s26, s28")
    a("s_mul_i32 s27, s27, 80")
    a("s_mul_i32 s30, s24, 5")
    a(f"v_and_b32 v{vC}, 15, v{vLane}")
    a(f"v_lshrrev_b32 v{vG}, 4, v{vLane}")
    a("s_waitcnt lgkmcnt(0)")
    srd(a, 12, 4, S*D*2)
    srd(a, 16, 40, WS_END)
    srd(a, 20, 10, S*D*2)
    a("s_cmp_ge_u32 s29, 4")
    a(f"s_cbranch_scc1 {name}_loader")
    a("s_and_b32 s31, s29, 1")
    a("s_lshr_b32 s32, s29, 1")
    a("s_mul_i32 s33, s31, 48")
    a("s_add_u32 s33, s33, s27")
    a(f"v_add_u32 v{vT0}, s33, v{vC}")
    a(f"v_mul_u32_u24 v{vT0}, 1152, v{vT0}")
    a("s_lshl_b32 s34, s28, 7")
    a("s_lshl_b32 s35, s32, 6")
    a("s_add_u32 s34, s34, s35")
    a(f"v_lshl_add_u32 v{vSt}, v{vG}, 4, v{vT0}")
    a(f"v_add_u32 v{vSt}, s34, v{vSt}")
    a(f"v_lshl_add_u32 v{vT1}, v{vG}, 3, v{vT0}")
    a(f"v_add_u32 v{vT1}, s34, v{vT1}")
    for i in range(3):
        for bb in range(2):
            x = XR + (i*2+bb)*2
            a(f"buffer_load_dwordx2 v[{x}:{x+1}], v{vT1}, s[12:15], 0 offen offset:{bb*32}")
        if i < 2:
            a(f"v_add_u32 v{vT1}, {16*1152}, v{vT1}")
    a(f"v_lshrrev_b32 v{vT0}, 2, v{vC}")
    a(f"v_sub_u32 v{vT2}, 0, v{vT0}")
    a(f"v_and_b32 v{vT2}, 3, v{vT2}")
    a(f"v_xor_b32 v{vT2}, v{vT2}, v{vG}")
    a(f"v_lshlrev_b32 v{vT2}, 4, v{vT2}")
    a(f"v_lshl_add_u32 v{vT2}, v{vC}, 6, v{vT2}")
    a("s_mul_i32 s33, s31, 3072")
    a(f"v_add_u32 v{bA}, s33, v{vT2}")
    a(f"v_lshl_add_u32 v{vT2}, v{vG}, 3, v{vT0}")
    a(f"v_lshlrev_b32 v{vT2}, 7, v{vT2}")
    a(f"v_bfe_u32 v{vT0}, v{vC}, 1, 1")
    a("s_lshl_b32 s33, s32, 2")
    a(f"v_or_b32 v{vT0}, s33, v{vT0}")
    a(f"v_bfe_u32 v{vT3}, v{vC}, 3, 1")
    a(f"v_lshlrev_b32 v{vT3}, 1, v{vT3}")
    a(f"v_xor_b32 v{vT0}, v{vT0}, v{vT3}")
    a(f"v_and_b32 v{vT3}, 1, v{vG}")
    a(f"v_lshlrev_b32 v{vT3}, 2, v{vT3}")
    a(f"v_xor_b32 v{vT0}, v{vT0}, v{vT3}")
    a(f"v_lshl_add_u32 v{vT2}, v{vT0}, 4, v{vT2}")
    a(f"v_and_b32 v{vT3}, 1, v{vC}")
    a(f"v_lshl_add_u32 v{vT2}, v{vT3}, 3, v{vT2}")
    a(f"v_add_u32 v{bWa}, 10240, v{vT2}")
    a(f"v_xor_b32 v{bWb}, 32, v{bWa}")
    a("s_waitcnt vmcnt(0)")
    for i in range(3):
        for bb in range(2):
            x = XR + (i*2+bb)*2; A = acc(i, bb)
            for h in range(2):
                a(f"v_lshlrev_b32 v{A+2*h}, 16, v{x+h}")
                a(f"v_and_b32 v{A+2*h+1}, 0xffff0000, v{x+h}")
    a("s_mov_b32 s36, 0")
    st.mark(1)
    a("s_barrier")
    st.mark(2)
    def reads(s, ks, rA, rWa, rWb):
        L = []
        for bb, rW in enumerate((rWa, rWb)):
            for h in range(2):
                f = frW(s, bb) + 2*h
                L.append(f"ds_read_b64_tr_b16 v[{f}:{f+1}], v{rW} offset:{ks*4096+h*512}")
        for i in range(3):
            L.append(f"ds_read_b128 {r4(frA(s,i))}, v{rA} offset:{ks*5120+i*1024}")
        return L
    for r in reads(0, 0, bA, bWa, bWb):
        a(r)
    a(f"s_mov_b32 s37, {NST//UNR}")
    a(f"v_mov_b32 v{vA}, v{bA}")
    a(f"v_mov_b32 v{vWa}, v{bWa}")
    a(f"v_mov_b32 v{vWb}, v{bWb}")
    a.raw(".p2align 6")
    a.label(f"{name}_loop")
    def half(su, rl, extra=()):
        idx = 0
        extra = list(extra)
        for i in range(3):
            for bb in range(2):
                if bb == 0:
                    a(f"s_waitcnt lgkmcnt({2-i+min(idx+ (1 if idx else 0),7)})")
                a(f"v_mfma_f32_16x16x32_bf16 {r4(acc(i,bb))}, {r4(frW(su,bb))}, {r4(frA(su,i))}, {r4(acc(i,bb))}")
                if idx == 0:
                    a(rl[0]); a(rl[1])
                elif idx + 1 < 7:
                    a(rl[idx+1])
                idx += 1
        for x in extra:
            a(x)
    adv = [f"s_add_u32 s36, s36, {SLOT}", f"s_cmp_ge_u32 s36, {SLOT*NSLOT}", "s_cselect_b32 s36, 0, s36",
           f"v_add_u32 v{vA}, s36, v{bA}", f"v_add_u32 v{vWa}, s36, v{bWa}", f"v_add_u32 v{vWb}, s36, v{bWb}"]
    for u in range(UNR):
        half(0, reads(1, 1, vA, vWa, vWb), adv)
        a("s_barrier")
        half(1, reads(0, 0, vA, vWa, vWb))
    a("s_sub_u32 s37, s37, 1")
    a("s_cmp_lg_u32 s37, 0")
    a(f"s_cbranch_scc1 {name}_loop")
    st.mark(3)
    a("s_waitcnt lgkmcnt(0)")
    a("s_nop 7")
    for i in range(3):
        if i == 2:
            a("s_cmp_eq_u32 s31, 1")
            a(f"s_cbranch_scc1 {name}_fin")
        Q = XR + i*4
        for bb in range(2):
            A = acc(i, bb)
            a(f"v_cvt_pk_bf16_f32 v{Q+2*bb}, v{A}, v{A+1}")
            a(f"v_cvt_pk_bf16_f32 v{Q+2*bb+1}, v{A+2}, v{A+3}")
        a("s_nop 1")
        a(f"v_permlane32_swap_b32 v{Q}, v{Q+2}")
        a(f"v_permlane32_swap_b32 v{Q+1}, v{Q+3}")
        a("s_nop 1")
        a(f"v_permlane16_swap_b32 v{Q}, v{Q+2}")
        a(f"v_permlane16_swap_b32 v{Q+1}, v{Q+3}")
        a("s_nop 1")
        a(f"buffer_store_dwordx4 v[{Q}:{Q+3}], v{vSt}, s[20:23], 0 offen{WT}")
        if i < 2:
            a(f"v_add_u32 v{vSt}, {16*1152}, v{vSt}")
    a.label(f"{name}_fin")
    st.mark(4)
    if stamps:
        a("s_waitcnt vmcnt(0)")
    st.mark(5)
    st.markrt(7)
    st.dump(8, 29, vT0, vT1)
    a("s_endpgm")
    a.label(f"{name}_loader")
    a("s_sub_u32 s31, s29, 4")
    a(f"v_lshrrev_b32 v{vT0}, 3, v{vLane}")
    a(f"v_mul_u32_u24 v{vT0}, 1152, v{vT0}")
    a(f"v_bfe_u32 v{vT1}, v{vLane}, 4, 1")
    a(f"v_lshlrev_b32 v{vT1}, 1, v{vT1}")
    a(f"v_and_b32 v{vT2}, 7, v{vLane}")
    a(f"v_xor_b32 v{vT1}, v{vT1}, v{vT2}")
    a(f"v_lshlrev_b32 v{vT1}, 4, v{vT1}")
    a(f"v_xor_b32 v{vT2}, 64, v{vT1}")
    a("s_lshl_b32 s32, s28, 7")
    a(f"s_mul_i32 s33, s31, {32*1152}")
    a("s_add_u32 s32, s32, s33")
    a(f"v_add_u32 v{vT0}, s32, v{vT0}")
    for p in range(4):
        a(f"v_add_u32 v{1+p}, v{vT0}, v{vT1 + (p&1)}")
        if p:
            a(f"v_add_u32 v{1+p}, {p*(8*1152-1024)}, v{1+p}")
    a(f"v_lshlrev_b32 v5, 4, v{vLane}")
    a("s_lshl_b32 s32, s27, 6")
    a(f"s_mul_i32 s33, s31, {PLANE}")
    a("s_add_u32 s32, s32, s33")
    a(f"s_add_u32 s32, s32, {WS_HO}")
    a("s_mul_i32 s38, s31, 5120")
    a("s_lshl_b32 s39, s31, 12")
    a("s_add_u32 s39, s39, 10240")
    a("s_and_b32 s9, s9, 0xffff")
    a("s_and_b32 s7, s7, 0xffff")
    a("s_mov_b32 s47, 0x00020000")
    a(f"s_mov_b32 s42, {FH*D*2}")
    a(f"s_mov_b32 s43, {D*D*2}")
    a("s_mov_b32 s36, 0")
    def issue():
        a(f"s_mul_i32 s33, s30, {2*PLANE}")
        a("s_add_u32 s33, s33, s32")
        a("s_add_u32 m0, s36, s38")
        a("s_cmp_lt_u32 s30, 36")
        a("s_cselect_b32 s44, s8, s6")
        a("s_cselect_b32 s45, s9, s7")
        a(f"s_cselect_b32 s46, s42, s43")
        a("s_cselect_b32 s34, 0, 36")
        for p in range(4):
            a(f"buffer_load_dwordx4 v5, s[16:19], s33 offen offset:{p*1024} lds")
        a("s_add_u32 m0, m0, 4096")
        a("s_add_u32 s33, s33, 4096")
        a("s_sub_u32 s34, s30, s34")
        a(f"buffer_load_dwordx4 v5, s[16:19], s33 offen lds")
        a("s_add_u32 m0, s36, s39")
        a(f"s_mul_i32 s34, s34, {64*1152}")
        for p in range(4):
            a(f"buffer_load_dwordx4 v{1+p}, s[44:47], s34 offen offset:{p*1024} lds")
        a("s_add_u32 s30, s30, 1")
        a(f"s_cmp_ge_u32 s30, {NST}")
        a("s_cselect_b32 s30, 0, s30")
        a(f"s_add_u32 s36, s36, {SLOT}")
        a(f"s_cmp_ge_u32 s36, {SLOT*NSLOT}")
        a("s_cselect_b32 s36, 0, s36")
    PRE = NSLOT - 1
    issue()
    issue()
    a(f"s_waitcnt vmcnt(9)")
    a("s_barrier")
    for _ in range(PRE - 2):
        issue()
    a(f"s_mov_b32 s37, {NST-PRE}")
    a.label(f"{name}_lloop")
    a(f"s_waitcnt vmcnt({9*(PRE-2)})")
    a("s_barrier")
    issue()
    a("s_sub_u32 s37, s37, 1")
    a("s_cmp_lg_u32 s37, 0")
    a(f"s_cbranch_scc1 {name}_lloop")
    for r in range(PRE):
        a(f"s_waitcnt vmcnt({9*max(PRE-2-r,0)})")
        a("s_barrier")
    a("s_endpgm")
    a.label(f"{name}_end")
    a("s_endpgm")
    return NV
```

```python
import build
build.build(["k1","k2","k3"], "v_1.s", stamps=True, k1=dict(pf2=False), k2mod="k2_A")
build.build(["k1","k2","k3"], "v_2.s", stamps=True, k1=dict(pf2=False), k2mod="k2_B")
build.build(["k1","k2","k3"], "v_3.s", stamps=True, k1=dict(pf2=True), k2mod="k2_B")
build.build(["k1","k2","k3"], "h_a.s", k1=dict(pf2=False), k2mod="k2_A")
build.build(["k1","k2","k3"], "h_b.s", k1=dict(pf2=False), k2mod="k2_B")
build.build(["k1","k2","k3"], "h_c.s", k1=dict(pf2=True), k2mod="k2_B")
build.build(["k1","k2","k3"], "h_d.s", k1=dict(pf2=True), k2mod="k2_A")
```

```python
import struct
from asmlib import *
from layout import *
WT = " sc1"

SLOT = 34816
NSLOT = 4
K2_LDS = SLOT * NSLOT

def r4(x): return f"v[{x}:{x+3}]"

def swap_pair(a, Q):
    a("s_nop 1")
    a(f"v_permlane32_swap_b32 v{Q}, v{Q+2}")
    a(f"v_permlane32_swap_b32 v{Q+1}, v{Q+3}")
    a("s_nop 0")
    a(f"v_permlane16_swap_b32 v{Q}, v{Q+2}")
    a(f"v_permlane16_swap_b32 v{Q+1}, v{Q+3}")

def gen_k2(a, name="k2_kernel", side=True, stamps=False, UNR=4, pfw=False, pb=4, pa=2):
    st = Stamps(a, stamps, 1)
    ACC = 0
    FR = 72
    Z1R = 160
    vW0, vW1, vZ0, vZ1 = 196, 197, 198, 199
    bW0, bW1, bZ0, bZ1 = 200, 201, 202, 203
    vT0, vT1, vT2, vT3 = 204, 205, 206, 207
    vLane, vC, vG = 208, 209, 210
    vSt, vSt1 = 211, 212
    vBias0, vBias1 = 214, 215
    NV = 216
    def acc(j, b): return ACC + (j*9+b)*4
    def frW(s, j): return FR + s*44 + j*4
    def frZ(s, b): return FR + s*44 + 8 + b*4
    kernel_header(a, name)
    a("s_cmp_ge_u32 s2, 256")
    a(f"s_cbranch_scc1 {name}_end")
    st.mark(0)
    st.markrt(6)
    a("s_load_dwordx4 s[4:7], s[0:1], 40")
    a("s_load_dwordx2 s[8:9], s[0:1], 80")
    a("s_load_dwordx2 s[56:57], s[0:1], 56")
    a("s_load_dwordx2 s[58:59], s[0:1], 16")
    a(f"v_lshrrev_b32 v{vT0}, 6, v0")
    a(f"v_and_b32 v{vLane}, 63, v0")
    a(f"v_readfirstlane_b32 s29, v{vT0}")
    a("s_and_b32 s24, s2, 7")
    a("s_lshr_b32 s25, s2, 3")
    a("s_and_b32 s26, s24, 1")
    a("s_lshl_b32 s26, s26, 3")
    a("s_and_b32 s27, s25, 7")
    a("s_add_u32 s26, s26, s27")
    a("s_lshr_b32 s27, s24, 1")
    a("s_lshl_b32 s27, s27, 2")
    a("s_lshr_b32 s28, s25, 3")
    a("s_add_u32 s27, s27, s28")
    a("s_lshl_b32 s30, s24, 2")
    a(f"v_and_b32 v{vC}, 15, v{vLane}")
    a(f"v_lshrrev_b32 v{vG}, 4, v{vLane}")
    a(f"v_lshrrev_b32 v{vT0}, 2, v{vC}")
    a(f"v_sub_u32 v{vT0}, 0, v{vT0}")
    a(f"v_and_b32 v{vT0}, 3, v{vT0}")
    a(f"v_xor_b32 v{vT1}, v{vT0}, v{vG}")
    a(f"v_lshlrev_b32 v{vT1}, 4, v{vT1}")
    a(f"v_lshl_add_u32 v{vSt}, v{vC}, 6, v{vT1}")
    a(f"v_lshrrev_b32 v{vT1}, 1, v{vG}")
    a(f"v_xor_b32 v{vT1}, v{vT0}, v{vT1}")
    a(f"v_lshlrev_b32 v{vT1}, 4, v{vT1}")
    a(f"v_lshl_add_u32 v{vSt1}, v{vC}, 6, v{vT1}")
    a(f"v_and_b32 v{vT1}, 1, v{vG}")
    a(f"v_lshl_add_u32 v{vSt1}, v{vT1}, 3, v{vSt1}")
    a("s_waitcnt lgkmcnt(0)")
    srd(a, 12, 4, S*S*2)
    srd(a, 16, 8, WS_END)
    srd(a, 20, 6, S*2)
    a("s_cmp_ge_u32 s29, 4")
    a(f"s_cbranch_scc1 {name}_loader")
    a("s_lshl_b32 s32, s26, 7")
    a("s_lshl_b32 s33, s29, 5")
    a("s_add_u32 s32, s32, s33")
    a(f"v_add_u32 v{vT1}, s32, v{vC}")
    a(f"v_lshlrev_b32 v{vT2}, 1, v{vT1}")
    a(f"buffer_load_ushort v{vBias0}, v{vT2}, s[20:23], 0 offen")
    a(f"buffer_load_ushort v{vBias1}, v{vT2}, s[20:23], 0 offen offset:32")
    a("s_lshl_b32 s31, s26, 4")
    a("s_add_u32 s31, s31, s27")
    a("s_lshl_b32 s31, s31, 2")
    a("s_add_u32 s31, s31, s29")
    a("s_mul_i32 s31, s31, 9216")
    a(f"s_add_u32 s31, s31, {WS_Z1}")
    a("s_mul_i32 s35, s27, 9")
    a("s_lshr_b32 s35, s35, 1")
    a(f"s_mul_i32 s35, s35, {PLANE}")
    a("s_lshl_b32 s33, s32, 6")
    a("s_add_u32 s35, s35, s33")
    a(f"s_add_u32 s35, s35, {WS_HO}")
    a(f"v_and_b32 v{vT0}, 7, v{vC}")
    a(f"v_xor_b32 v{vT0}, v{vT0}, v{vG}")
    a(f"v_lshlrev_b32 v{vT0}, 4, v{vT0}")
    a(f"v_lshl_add_u32 v{vT0}, v{vC}, 7, v{vT0}")
    a(f"v_xor_b32 v{vT2}, 64, v{vT0}")
    a("s_lshl_b32 s33, s29, 12")
    a(f"v_add_u32 v{bW0}, s33, v{vT0}")
    a(f"v_add_u32 v{bW1}, s33, v{vT2}")
    a(f"v_add_u32 v{bZ0}, 16384, v{vT0}")
    a(f"v_add_u32 v{bZ1}, 16384, v{vT2}")
    a(f"v_lshlrev_b32 v{vT3}, 4, v{vLane}")
    a("s_waitcnt vmcnt(0)")
    a(f"v_lshlrev_b32 v{vBias0}, 16, v{vBias0}")
    a(f"v_lshlrev_b32 v{vBias1}, 16, v{vBias1}")
    ik = hex(struct.unpack("<I", struct.pack("<f", 1.0/GK))[0])
    a(f"v_mul_f32 v{vBias0}, {ik}, v{vBias0}")
    a(f"v_mul_f32 v{vBias1}, {ik}, v{vBias1}")
    for j in range(2):
        for i in range(36):
            a(f"v_mov_b32 v{ACC+j*36+i}, v{vBias0+j}")
    a("s_mov_b32 s36, 0")
    st.mark(1)
    a("s_barrier")
    st.mark(2)
    def reads(s, vW, vZ):
        L = [f"ds_read_b128 {r4(frW(s,j))}, v{vW} offset:{j*2048}" for j in range(2)]
        L += [f"ds_read_b128 {r4(frZ(s,b))}, v{vZ} offset:{b*2048}" for b in range(9)]
        return L
    for r in reads(0, bW0, bZ0):
        a(r)
    a(f"s_mov_b32 s37, {32//UNR}")
    a(f"v_mov_b32 v{vW1}, v{bW1}")
    a(f"v_mov_b32 v{vZ1}, v{bZ1}")
    a.raw(".p2align 6")
    a.label(f"{name}_loop")
    def half(su, rl, extra=()):
        idx = 0
        extra = list(extra)
        for b in range(9):
            for j in range(2):
                if j == 0:
                    a(f"s_waitcnt lgkmcnt({8-b+min(idx,11)})")
                a(f"v_mfma_f32_16x16x32_bf16 {r4(acc(j,b))}, {r4(frZ(su,b))}, {r4(frW(su,j))}, {r4(acc(j,b))}")
                if idx < 11:
                    a(rl[idx])
                elif extra:
                    for x in extra.pop(0):
                        a(x)
                idx += 1
    adv = [[f"s_add_u32 s36, s36, {SLOT}", f"s_cmp_ge_u32 s36, {K2_LDS}", "s_cselect_b32 s36, 0, s36"],
           [f"v_add_u32 v{vW0}, s36, v{bW0}"], [f"v_add_u32 v{vZ0}, s36, v{bZ0}"]]
    nxt = [[f"v_add_u32 v{vW1}, s36, v{bW1}"], [f"v_add_u32 v{vZ1}, s36, v{bZ1}"]]
    for u in range(UNR):
        half(0, reads(1, vW1, vZ1), adv)
        a("s_barrier")
        if u == 0:
            a("s_cmp_eq_u32 s37, 1")
            a(f"s_cbranch_scc1 {name}_z1")
            a.label(f"{name}_z1back")
        half(1, reads(0, vW0, vZ0), nxt)
    a("s_sub_u32 s37, s37, 1")
    a("s_cmp_lg_u32 s37, 0")
    a(f"s_cbranch_scc1 {name}_loop")
    st.mark(3)
    a("s_waitcnt vmcnt(0) lgkmcnt(0)")
    a("s_bitcmp1_b32 s27, 0")
    a(f"s_cbranch_scc1 {name}_epi1")
    for par in range(2):
        if par:
            a.label(f"{name}_epi1")
            a(f"v_xor_b32 v{vSt1}, 32, v{vSt1}")
        for j in range(2):
            for b in range(9):
                A = acc(j, b); P = FR + (j*9+b)*2; Z = Z1R + b*4 + j*2
                for h in range(2):
                    a(f"v_lshlrev_b32 v{vT0}, 16, v{Z+h}")
                    a(f"v_and_b32 v{vT1}, 0xffff0000, v{Z+h}")
                    a(f"v_pk_mul_f32 v[{A+2*h}:{A+2*h+1}], v[{A+2*h}:{A+2*h+1}], v[{vT0}:{vT1}]")
                    a(f"v_cvt_pk_bf16_f32 v{P+h}, v{A+2*h}, v{A+2*h+1}")
                single = (b == (0 if par else 8))
                if single:
                    pl = 0 if par else 4
                    a(f"s_add_u32 s34, s35, {pl*PLANE + j*1024}")
                    a(f"buffer_store_dwordx2 v[{P}:{P+1}], v{vSt1}, s[16:19], s34 offen{WT}")
                elif (b + par) % 2 == 1 - 0 and (b - par) % 2 == 1:
                    Q = P - 2
                    pl = (b + par) // 2
                    a(f"s_add_u32 s34, s35, {pl*PLANE + j*1024}")
                    swap_pair(a, Q)
                    a(f"buffer_store_dwordx4 v[{Q}:{Q+3}], v{vSt}, s[16:19], s34 offen{WT}")
        st.mark(4)
        if stamps:
            a("s_waitcnt vmcnt(0)")
        st.mark(5)
        st.markrt(7)
        st.dump(8, 29, vT0, vT1)
        a("s_endpgm")
    a.label(f"{name}_z1")
    for i in range(9):
        if i % 4 == 0 and i:
            a("s_add_u32 s31, s31, 4096")
        a(f"buffer_load_dwordx4 {r4(Z1R+4*i)}, v{vT3}, s[16:19], s31 offen offset:{(i%4)*1024}")
    a(f"s_branch {name}_z1back")
    a.label(f"{name}_loader")
    a(f"v_lshrrev_b32 v{vT0}, 3, v{vLane}")
    a(f"v_and_b32 v{vT1}, 7, v{vLane}")
    a(f"v_xor_b32 v{vT1}, v{vT1}, v{vT0}")
    a(f"v_lshlrev_b32 v{vT1}, 4, v{vT1}")
    a("s_lshl_b32 s31, s26, 7")
    a(f"v_add_u32 v{vT0}, s31, v{vT0}")
    LW = 196
    a(f"v_lshl_add_u32 v{LW}, v{vT0}, 12, v{vT1}")
    for p in range(1, 4):
        a(f"v_add_u32 v{LW+p}, {p*(32768-1024)}, v{LW}")
    a(f"v_lshlrev_b32 v{LW+4}, 4, v{vLane}")
    a(f"s_mul_i32 s32, s27, {32*18432}")
    a(f"s_add_u32 s32, s32, {WS_Z2T}")
    a("s_mov_b32 s36, 0")
    if pfw:
        a("s_cmp_eq_u32 s29, 6")
        a(f"s_cbranch_scc1 {name}_pfw")
    a("s_cmp_eq_u32 s29, 5")
    a(f"s_cbranch_scc1 {name}_loader1")
    for L in range(2):
        if L == 1:
            a.label(f"{name}_loader1")
        def issue():
            a("s_lshl_b32 s33, s30, 7")
            a("s_mul_i32 s34, s30, 18432")
            a("s_add_u32 s34, s34, s32")
            if L == 0:
                for g in range(4):
                    a(f"s_add_u32 m0, s36, {g*4096}")
                    if g:
                        a("s_add_u32 s33, s33, 131072")
                    else:
                        a("s_nop 0")
                    for p in range(4):
                        a(f"buffer_load_dwordx4 v{LW+p}, s[12:15], s33 offen offset:{p*1024} lds")
                a(f"s_add_u32 m0, s36, {16384+16384}")
                a("s_add_u32 s34, s34, 16384")
                a(f"buffer_load_dwordx4 v{LW+4}, s[16:19], s34 offen offset:1024 lds")
            else:
                for g in range(5):
                    a(f"s_add_u32 m0, s36, {16384+g*4096}")
                    if g:
                        a("s_add_u32 s34, s34, 4096")
                    else:
                        a("s_nop 0")
                    for p in range(4 if g < 4 else 1):
                        a(f"buffer_load_dwordx4 v{LW+4}, s[16:19], s34 offen offset:{p*1024} lds")
            a("s_add_u32 s30, s30, 1")
            a("s_and_b32 s30, s30, 31")
            a(f"s_add_u32 s36, s36, {SLOT}")
            a(f"s_cmp_ge_u32 s36, {K2_LDS}")
            a("s_cselect_b32 s36, 0, s36")
        issue()
        issue()
        a("s_waitcnt vmcnt(17)")
        a("s_barrier")
        issue()
        a("s_mov_b32 s37, 29")
        a.label(f"{name}_lloop{L}")
        a("s_waitcnt vmcnt(17)")
        a("s_barrier")
        issue()
        a("s_sub_u32 s37, s37, 1")
        a("s_cmp_lg_u32 s37, 0")
        a(f"s_cbranch_scc1 {name}_lloop{L}")
        if L == 0:
            a(f"s_branch {name}_ltail")
    a.label(f"{name}_ltail")
    sl = Asm()
    nside = gen_side_loads(sl, FR=0, vLane=vLane, vC=vC, vG=vG, vT=LW)
    n = 0
    for l in sl.lines:
        a.raw(l)
        if "buffer_load" in l:
            n += 1
            if n == 8:
                a(f"s_waitcnt vmcnt({17+n})")
                a("s_barrier")
            if n == 24:
                a(f"s_waitcnt vmcnt({n})")
                a("s_barrier")
    a("s_barrier")
    if side:
        gen_side_compute(a, name, FR=0, vSt=vSt, vSt1=vSt1)
    a.label(f"{name}_end")
    a("s_endpgm")
    if pfw:
        a.label(f"{name}_pfw")
        a("s_lshl_b32 s33, s28, 17")
        for p_ in range(4):
            a(f"v_add_u32 v{LW+p_}, s33, v{LW+p_}")
        a("s_add_u32 s30, s30, 3")
        issued = 3
        def pfi():
            a("s_and_b32 s30, s30, 31")
            a("s_lshl_b32 s33, s30, 7")
            for p_ in range(4):
                a(f"buffer_load_dwordx4 v[0:3], v{LW+p_}, s[12:15], s33 offen offset:{p_*1024}")
            a("s_add_u32 s30, s30, 1")
        for _ in range(pa):
            pfi(); issued += 1
        for sg in range(33):
            if sg % pb == 0:
                for q in range(pb):
                    if issued < 32:
                        pfi(); issued += 1
                a("s_waitcnt vmcnt(32)")
            if sg == 29:
                srd(a, 60, 56, FH*D*2)
                a("s_mul_i32 s33, s2, 11264")
                for i in range(11):
                    if i % 4 == 0 and i:
                        a("s_add_u32 s33, s33, 4096")
                    a(f"buffer_load_dwordx4 v[0:3], v{LW+4}, s[60:63], s33 offen offset:{(i%4)*1024}")
                srd(a, 60, 58, D*D*2)
                a("s_mul_i32 s33, s2, 3072")
                for i in range(3):
                    a(f"buffer_load_dwordx4 v[0:3], v{LW+4}, s[60:63], s33 offen offset:{i*1024}")
            a("s_barrier")
        a("s_endpgm")
    return NV

def _sKV(FR, t, f): return FR + (t*4+f)*4
def _sPQ(FR, t, j, k): return FR + 80 + (t*4+j*2+k)*4
def _sAC(FR, j, mat): return FR + 160 + (j*2+mat)*4
_sO = 176

def gen_side_loads(a, FR, vLane, vC, vG, vT):
    a("s_lshr_b32 s40, s2, 2")
    a("s_and_b32 s41, s2, 3")
    a("s_and_b32 s42, s41, 1")
    a("s_sub_u32 s43, s29, 4")
    a("s_lshl_b32 s44, s43, 2")
    a("s_add_u32 s44, s44, s42")
    a("s_mul_i32 s45, s41, 36864")
    a(f"s_add_u32 s45, s45, {WS_KVF}")
    a(f"s_mul_i32 s46, s41, {5*PLANE}")
    a("s_lshl_b32 s47, s40, 11")
    a("s_add_u32 s46, s46, s47")
    a(f"s_add_u32 s46, s46, {WS_PQ}")
    a(f"v_lshlrev_b32 v{vT}, 4, v{vLane}")
    a(f"v_lshlrev_b32 v{vT+1}, 6, v{vC}")
    a(f"v_lshl_add_u32 v{vT+1}, v{vG}, 4, v{vT+1}")
    tab = 0
    for b in range(9):
        tab |= PB[b] << (2*b)
    n = 0
    for t in range(5):
        if t == 4:
            a("s_cmp_eq_u32 s42, 0")
            a("s_cselect_b32 s48, 8, 0")
        else:
            a(f"s_add_u32 s48, s44, {t}")
        a("s_lshl_b32 s49, s48, 12")
        a("s_add_u32 s49, s49, s45")
        for f in range(4):
            a(f"buffer_load_dwordx4 {r4(_sKV(FR,t,f))}, v{vT}, s[16:19], s49 offen offset:{f*1024}")
        a("s_lshl_b32 s50, s48, 1")
        a(f"s_lshr_b32 s50, {tab:#x}, s50")
        a("s_and_b32 s50, s50, 3")
        a(f"s_mul_i32 s50, s50, {PLANE}")
        a("s_add_u32 s50, s50, s46")
        for k in range(2):
            for j in range(2):
                a(f"buffer_load_dwordx4 {r4(_sPQ(FR,t,j,k))}, v{vT+1}, s[16:19], s50 offen offset:{j*1024}")
            if k == 0:
                a(f"s_add_u32 s50, s50, {PLANE}")
        n += 8
    return n

def gen_side_compute(a, name, FR, vSt, vSt1):
    a("s_mul_i32 s51, s41, 9")
    a("s_lshr_b32 s51, s51, 1")
    a("s_add_u32 s51, s51, 72")
    a(f"s_mul_i32 s51, s51, {PLANE}")
    a("s_add_u32 s51, s51, s47")
    a(f"s_add_u32 s51, s51, {WS_HO}")
    a("s_lshl_b32 s52, s43, 1")
    a("s_add_u32 s52, s52, s42")
    a(f"s_mul_i32 s52, s52, {PLANE}")
    a("s_add_u32 s52, s52, s51")
    a("s_mov_b32 s53, 0x358637bd")
    for t in range(5):
        if t == 4:
            a("s_cmp_lg_u32 s43, 0")
            a(f"s_cbranch_scc1 {name}_end")
        a(f"s_waitcnt vmcnt({(4-t)*8 + (2 if t in (2,3) else 0) + (4 if t == 4 else 0) - (0)})")
        for j in range(2):
            for mat in range(2):
                A = _sAC(FR, j, mat)
                a(f"v_mfma_f32_16x16x32_bf16 {r4(A)}, {r4(_sKV(FR,t,mat*2))}, {r4(_sPQ(FR,t,j,0))}, 0")
        for j in range(2):
            for mat in range(2):
                A = _sAC(FR, j, mat)
                a(f"v_mfma_f32_16x16x32_bf16 {r4(A)}, {r4(_sKV(FR,t,mat*2+1))}, {r4(_sPQ(FR,t,j,1))}, {r4(A)}")
        a("s_nop 7")
        for j in range(2):
            A = _sAC(FR, j, 0); Dn = _sAC(FR, j, 1)
            P = _sO + j*4 + (t % 2)*2 + (8 if t >= 2 else 0) + (8 if t >= 4 else 0)
            if j == 1:
                pass
            for r in range(4):
                a(f"v_add_f32 v{Dn+r}, s53, v{Dn+r}")
            for r in range(4):
                a(f"v_rcp_f32 v{Dn+r}, v{Dn+r}")
            a("s_nop 0")
            for r in range(4):
                a(f"v_mul_f32 v{A+r}, v{A+r}, v{Dn+r}")
            a(f"v_cvt_pk_bf16_f32 v{P}, v{A}, v{A+1}")
            a(f"v_cvt_pk_bf16_f32 v{P+1}, v{A+2}, v{A+3}")
        if t in (1, 3):
            for j in range(2):
                Q = _sO + j*4 + (8 if t >= 2 else 0)
                swap_pair(a, Q)
                a(f"buffer_store_dwordx4 v[{Q}:{Q+3}], v{vSt}, s[16:19], s52 offen offset:{j*1024}{WT}")
            a(f"s_add_u32 s52, s52, {PLANE}")
        if t == 4:
            a("s_lshl_b32 s54, s42, 5")
            a(f"v_xor_b32 v{vSt1}, s54, v{vSt1}")
            a("s_cmp_eq_u32 s42, 0")
            a(f"s_cselect_b32 s54, {4*PLANE}, 0")
            a("s_add_u32 s54, s54, s51")
            for j in range(2):
                P = _sO + 16 + j*4
                a(f"buffer_store_dwordx2 v[{P}:{P+1}], v{vSt1}, s[16:19], s54 offen offset:{j*1024}{WT}")
```

```python
import build, k2_B, k2_A, k3
def mk(name, stamps, k2mod, wt2, wt3, **k1):
    k2_A.WT = k2_B.WT = wt2; k3.WT = wt3
    build.build(["k1","k2","k3"], name, stamps=stamps, k1=k1, k2mod=k2mod)
mk("h_a.s", False, "k2_B", " sc1", " sc1", pf2=True)
mk("h_b.s", False, "k2_B", "", " sc1", pf2=True)
mk("h_c.s", False, "k2_B", "", "", pf2=True)
mk("h_d.s", False, "k2_A", "", "", pf2=True)
mk("h_e.s", False, "k2_A", "", "", pf2=False)
mk("h_f.s", False, "k2_B", " sc1", "", pf2=True)
```

```python
import struct
from asmlib import *
from layout import *
from k2 import swap_pair, r4

WSLOT = 20480
NRING = 4
PARK0 = WSLOT * NRING
PP = 296
PSZ = 128 * PP
PARK1 = PARK0 + PSZ
LFLAG = PARK1 + PSZ
LSTAT = LFLAG + 64
LJUNK = LSTAT
K1_LDS = LJUNK + 4096
DLOOK = 6
OOB = 0x7f000000

XA = 0
ACC = 144
RING = 216
JUNK = RING + 24
VD = 244
vRd = 249
vRdB = 250
vL16 = 251
vT = 252
NV = 256
XJ = 252
def xa(j, ks): return XA + (ks*2+j)*4
def acc(j, b): return ACC + (b*2+j)*4
def f2h(x): return hex(struct.unpack("<I", struct.pack("<f", x))[0])
def pr(x): return f"v[{x}:{x+1}]"

sM, sCG, sRole, sW8, sW4, sG = 20, 21, 22, 23, 24, 25
sStep = 26
sCol = [27, 28, 29]
sDoff, sDslot, sRslot = 30, 31, 32
sT0, sT1, sT2, sT3, sT4 = 33, 34, 35, 36, 37
sColNext = 38
sPf = 39
sN = 40
sPark = 41
sWm0 = 43
sGC = 46
sL2E = 48
sRet = 50
sNt = [52, 53, 54]
sSpin = 55
sOnes = 42
sZ1 = 44
sFirst = 98
sEarly = 96
sSt = 97
sTagOff = 3
sTag = 84
sPubW = 45
sWp = 82
PFS = 56

def gen_k1(a, name="k1_kernel", stamps=False, wt="", prefetch=False, wpf=True, exp="", pm=2, ps=0, fine=False, pslp=16, fs=6, ep=False, es=8, swapq=True, pf2=True, cpf=True):
    st = Stamps(a, stamps, 0)
    N = name
    def lane_cg(vc, vg, a=a):
        a(f"v_bfe_u32 v{vc}, v{vL16}, 4, 4")
        a(f"v_lshrrev_b32 v{vg}, 8, v{vL16}")
    def dma_groups():
        return [
            [f"s_add_u32 m0, s{sDslot}, s{sWm0}", f"s_add_u32 s{sDslot}, s{sDslot}, {WSLOT}",
             f"buffer_load_dwordx4 v{VD}, s[8:11], s{sDoff} offen lds"],
            [f"buffer_load_dwordx4 v{VD+1}, s[8:11], s{sDoff} offen offset:1024 lds"],
            [f"buffer_load_dwordx4 v{VD+2}, s[8:11], s{sDoff} offen offset:2048 lds"],
            [f"buffer_load_dwordx4 v{VD+3}, s[8:11], s{sDoff} offen offset:3072 lds"],
            ["s_add_u32 m0, m0, 4096", f"s_cmp_ge_u32 s{sDslot}, {WSLOT*NRING}", f"s_cselect_b32 s{sDslot}, 0, s{sDslot}",
             f"buffer_load_dwordx4 v{VD+4}, s[8:11], s{sDoff} offen lds", f"s_add_u32 s{sDoff}, s{sDoff}, s{sStep}"],
        ]
    def dma_issue():
        for g in dma_groups():
            for l in g:
                a(l)
    def pf_group(junk=JUNK):
        return [f"buffer_load_dwordx4 {r4(junk)}, v{vL16}, s[{PFS}:{PFS+3}], s{sPf} offen", f"s_add_u32 s{sPf}, s{sPf}, 4096"]
    class Side:
        def __init__(self, solo, q0=(), last=False):
            self.solo = solo
            self.last = last
            self.q = list(q0)
        def slot(self, sl, body=None, extra=None, lgkm=False, drain=False):
            lines = [l.strip() for l in body.lines] if body is not None else []
            groups = []
            if not self.solo:
                if sl > 0 and not (self.last and sl >= 7):
                    groups = dma_groups()
                    if sl == 7:
                        groups[0] = [f"s_mov_b32 s{sDoff}, s{sColNext}"] + groups[0]
                if extra:
                    groups.append(extra)
            pts = [i for i in range(1, len(lines)) if lines[i].startswith("v_") and lines[i-1].startswith("v_")
                   and "readfirstlane" not in lines[i] and "cndmask" not in lines[i]]
            ins = {}
            if groups:
                ins[0] = list(groups[0])
                rest = groups[1:]
                if len(pts) >= len(rest) and rest:
                    for k, g in enumerate(rest):
                        ins.setdefault(pts[(k+1)*len(pts)//(len(rest)+1)], []).extend(g)
                else:
                    for g in rest:
                        ins[0].extend(g)
            for i, l in enumerate(lines + [None]):
                seq = list(ins.get(i, [])) + ([l] if l is not None else [])
                for x in seq:
                    if x.endswith(":"):
                        a.label(x[:-1])
                    else:
                        a(x)
                    if x.startswith("buffer_") and "store_byte" not in x and ";nc" not in x:
                        self.q.append(f"D{sl+2}" if x.endswith(" lds") else "x")
            if not self.solo:
                need = f"D{sl+1}"
                n = None
                if drain:
                    n = 0
                elif need in self.q:
                    n = len(self.q) - 1 - max(i for i, x in enumerate(self.q) if x == need)
                w = []
                if n is not None:
                    w.append(f"vmcnt({min(n, 63)})")
                if lgkm:
                    w.append("lgkmcnt(0)")
                if w:
                    a("s_waitcnt " + " ".join(w))
                a("s_barrier")
        def finish(self, pad=True):
            if not self.solo:
                dma_issue()
                if pad:
                    a(f"s_mov_b32 s{sT0}, {OOB}")
                    a(f"buffer_load_dword v{vT}, v{vL16}, s[12:15], s{sT0} offen")
    def set_flag(a):
        L = f"{N}_nf{set_flag.n}"; set_flag.n += 1
        a(f"s_cmp_lg_u32 s{sW4}, 0")
        a(f"s_cbranch_scc1 {L}")
        a(f"s_lshl_b32 s{sT0}, s{sM}, 4")
        a(f"s_lshl_b32 s{sT1}, s{sCG}, 2")
        a(f"s_add_u32 s{sT0}, s{sT0}, s{sT1}")
        a(f"s_add_u32 s{sT0}, s{sT0}, s{sRole}")
        a(f"v_mov_b32 v{JUNK}, 1")
        a("s_nop 0")
        a(f"v_mov_b32 v{JUNK+1}, 0")
        a(f"buffer_store_byte v{JUNK}, v{JUNK+1}, s[16:19], s{sT0} offen sc1")
        a.label(L)
    set_flag.n = 0
    def call(lbl):
        a(f"s_call_b64 s[{sRet}:{sRet+1}], {N}_{lbl}")
    def ret():
        a(f"s_setpc_b64 s[{sRet}:{sRet+1}]")
    def poll_stats(tag, slp):
        TMP = RING
        a(f"v_mov_b32 v{vT+3}, {LFLAG}")
        a(f"s_mov_b32 s{sSpin}, 0")
        a(f"ds_read_b32 v{TMP}, v{vT+3}")
        a("s_waitcnt lgkmcnt(0)")
        a(f"v_readfirstlane_b32 s{sT1}, v{TMP}")
        a(f"s_cmp_lg_u32 s{sT1}, 1")
        a(f"s_cbranch_scc1 {N}_{tag}slow")
        a.label(f"{N}_{tag}go")
        b = Asm()
        pend.append(b)
        a_main, a2 = a, b
        a2.label(f"{N}_{tag}slow")
        slow(a2, tag, slp)
    pend = []
    def slow(a, tag, slp):
        TMP = RING
        a(f"s_cmp_lg_u32 s{sW8}, 4")
        a(f"s_cbranch_scc1 {N}_{tag}wait")
        a(f"s_lshl_b32 s{sT0}, s{sM}, 4")
        a(f"v_mov_b32 v{vT+2}, 0")
        a.label(f"{N}_{tag}poll")
        a(f"buffer_load_dwordx4 {r4(TMP)}, v{vT+2}, s[16:19], s{sT0} offen sc1")
        a(f"s_add_u32 s{sSpin}, s{sSpin}, 1")
        a("s_waitcnt vmcnt(0)")
        a(f"v_and_b32 v{TMP}, v{TMP}, v{TMP+1}")
        a(f"v_and_b32 v{TMP+2}, v{TMP+2}, v{TMP+3}")
        a(f"v_and_b32 v{TMP}, v{TMP}, v{TMP+2}")
        a("s_nop 0")
        a(f"v_readfirstlane_b32 s{sT1}, v{TMP}")
        a(f"s_and_b32 s{sT1}, s{sT1}, 0x01010100")
        a(f"s_cmp_eq_u32 s{sT1}, 0x01010100")
        a(f"s_cbranch_scc1 {N}_{tag}seen")
        a(f"s_sleep {slp}")
        a(f"s_cmp_lt_u32 s{sSpin}, 0x20000")
        a(f"s_cbranch_scc1 {N}_{tag}poll")
        a.label(f"{N}_{tag}seen")
        a(f"v_mov_b32 v{TMP}, 1")
        a(f"ds_write_b32 v{vT+3}, v{TMP}")
        a(f"s_branch {N}_{tag}go")
        a.label(f"{N}_{tag}wait")
        a(f"ds_read_b32 v{TMP}, v{vT+3}")
        a(f"s_add_u32 s{sSpin}, s{sSpin}, 1")
        a("s_waitcnt lgkmcnt(0)")
        a(f"v_readfirstlane_b32 s{sT1}, v{TMP}")
        a(f"s_cmp_eq_u32 s{sT1}, 1")
        a(f"s_cbranch_scc1 {N}_{tag}go")
        a("s_sleep 4")
        a(f"s_cmp_lt_u32 s{sSpin}, 0x400000")
        a(f"s_cbranch_scc1 {N}_{tag}wait")
        a(f"s_branch {N}_{tag}go")
    def get_tag(a=a):
        a(f"v_mov_b32 v{vT+3}, {LFLAG}")
        a(f"ds_read_b32 v{vT+3}, v{vT+3}")
        a("s_waitcnt lgkmcnt(0)")
        a(f"v_readfirstlane_b32 s{sTag}, v{vT+3}")
        a(f"s_mul_i32 s{sTag+1}, s{sTag}, 0x9e3779b1")
        a(f"s_xor_b32 s{sTag+1}, s{sTag+1}, 0x5bd1e995")
    GR = XA + 64
    def stat_loads(a):
        a(f"v_lshrrev_b32 v{GR+32}, 9, v{vL16}")
        a(f"v_lshlrev_b32 v{GR+32}, 11, v{GR+32}")
        a(f"v_and_b32 v{GR+33}, 0x1f0, v{vL16}")
        a(f"v_add_u32 v{GR+32}, v{GR+32}, v{GR+33}")
        a(f"s_lshl_b32 s{sSt}, s{sM}, 15")
        a(f"s_lshl_b32 s{sT3}, s{sW4}, 9")
        a(f"s_add_u32 s{sSt}, s{sSt}, s{sT3}")
        a(f"s_add_u32 s{sSt}, s{sSt}, {WS_ST}")
        a(f"s_mov_b32 s{sT3}, s{sSt}")
        for q in range(8):
            a(f"buffer_load_dwordx4 {r4(GR+4*q)}, v{GR+32}, s[12:15], s{sT3} offen sc1")
            if q < 7:
                a(f"s_add_u32 s{sT3}, s{sT3}, 4096")
    def xreduce(a, R, n):
        for sw in ("v_permlane32_swap_b32", "v_permlane16_swap_b32"):
            for i in range(n):
                a(f"v_mov_b32 v{R+n+i}, v{R+i}")
            a("s_nop 1")
            for i in range(n):
                a(f"{sw} v{R+i}, v{R+n+i}")
            a("s_nop 1")
            for i in range(n):
                a(f"v_add_f32 v{R+i}, v{R+i}, v{R+n+i}")

    kernel_header(a, name)
    a("s_cmp_ge_u32 s2, 256")
    a(f"s_cbranch_scc1 {N}_end")
    st.mark(0)
    st.markrt(8)
    KP = 84
    a(f"s_load_dwordx4 s[{KP}:{KP+3}], s[0:1], 0")
    a(f"s_load_dwordx4 s[{KP+4}:{KP+7}], s[0:1], 32")
    a(f"s_load_dwordx4 s[{KP+8}:{KP+11}], s[0:1], 72")
    a(f"s_load_dwordx2 s[60:61], s[0:1], 56")
    a(f"s_load_dwordx2 s[62:63], s[0:1], 16")
    a(f"v_lshrrev_b32 v{vT}, 6, v0")
    a(f"v_and_b32 v{vT+3}, 63, v0")
    a(f"v_readfirstlane_b32 s{sW8}, v{vT}")
    a(f"v_lshlrev_b32 v{vL16}, 4, v{vT+3}")
    a(f"s_and_b32 s{sT0}, s2, 7")
    a(f"s_lshr_b32 s{sT1}, s2, 3")
    a(f"s_and_b32 s{sM}, s{sT0}, 1")
    a(f"s_lshl_b32 s{sM}, s{sM}, 3")
    a(f"s_and_b32 s{sT2}, s{sT1}, 7")
    a(f"s_add_u32 s{sM}, s{sM}, s{sT2}")
    a(f"s_lshr_b32 s{sCG}, s{sT0}, 1")
    a(f"s_lshr_b32 s{sRole}, s{sT1}, 3")
    if swapq:
        a(f"s_lshr_b32 s{sT2}, s{sRole}, 1")
        a(f"s_xor_b32 s{sT2}, s{sT2}, 1")
        a(f"s_xor_b32 s{sRole}, s{sRole}, s{sT2}")
    a(f"s_and_b32 s{sW4}, s{sW8}, 3")
    a(f"s_lshr_b32 s{sG}, s{sW8}, 2")
    a(f"s_mul_i32 s{sWm0}, s{sW4}, 5120")
    a(f"s_mov_b32 s{sGC}, {f2h(-GKAPPA)}")
    a(f"s_cmp_eq_u32 s{sRole}, 0")
    a(f"s_cselect_b32 s{sGC+1}, 1.0, {f2h(GK)}")
    a(f"s_mov_b32 s{sL2E}, 0x3fb8aa3b")
    a(f"s_mov_b32 s{sL2E+1}, 0x358637bd")
    a(f"s_mov_b32 s{sOnes}, 0x3f803f80")
    a(f"s_mov_b32 s{sPubW}, 0")
    a(f"s_xor_b32 s{sFirst}, s{sG}, 1")
    a(f"s_mov_b32 s{sEarly}, 0")
    a(f"v_lshrrev_b32 v{vT}, 3, v{vT+3}")
    a(f"v_and_b32 v{vT+1}, 7, v{vT+3}")
    a(f"v_xor_b32 v{vT+1}, v{vT+1}, v{vT}")
    a(f"v_lshlrev_b32 v{vT+1}, 4, v{vT+1}")
    a(f"s_lshl_b32 s{sT2}, s{sM}, 7")
    a(f"v_add_u32 v{vT}, s{sT2}, v{vT}")
    a(f"v_mul_u32_u24 v{vT}, 1152, v{vT}")
    a(f"v_add_u32 v{vT}, v{vT}, v{vT+1}")
    a(f"s_lshl_b32 s{sT2}, s{sCG}, 2")
    a(f"s_add_u32 s{sT2}, s{sT2}, s{sRole}")
    a(f"s_mul_i32 s{sT2}, s{sT2}, 9")
    a(f"s_add_u32 s{sT2}, s{sT2}, s{sW8}")
    a("s_waitcnt lgkmcnt(0)")
    srd(a, 4, KP, S*D*2)
    for q in range(18):
        a(f"s_cmp_ge_u32 s{sT2}, 144")
        a(f"s_cselect_b32 s{sT3}, 144, 0")
        a(f"s_sub_u32 s{sT2}, s{sT2}, s{sT3}")
        a(f"s_mul_hi_u32 s{sT3}, s{sT2}, {(2**32+8)//9}")
        a(f"s_lshl_b32 m0, s{sT2}, 10")
        a(f"s_mul_i32 s{sT4}, s{sT3}, {9216-9*128}")
        a(f"s_lshl_b32 s{sT3}, s{sT2}, 7")
        a(f"s_add_u32 s{sT3}, s{sT3}, s{sT4}")
        a(f"buffer_load_dwordx4 v{vT}, s[4:7], s{sT3} offen lds")
        a(f"s_add_u32 s{sT2}, s{sT2}, 8")
    srd(a, 12, KP+10, WS_END)
    srd(a, 16, KP+8, 256)
    srd(a, PFS, KP+6, S*S*2)
    if cpf:
        a(f"s_cmp_lg_u32 s{sW8}, 7")
        a(f"s_cbranch_scc1 {N}_nocpf")
        a(f"s_getpc_b64 s[{sTag}:{sTag+1}]")
        a.label(f"{N}_pc")
        a(f"s_lshr_b32 s{sT0}, s2, 3")
        a(f"s_mul_i32 s{sT0}, s{sT0}, 3072")
        a(f"v_add_u32 v{RING}, s{sT0}, v{vL16}")
        a(f"v_mov_b32 v{RING+1}, (code_end - {N}_pc - 16)")
        for i in range(3):
            a(f"v_min_u32 v{RING+2}, v{RING}, v{RING+1}")
            a(f"global_load_dwordx4 {r4(RING+4)}, v{RING+2}, s[{sTag}:{sTag+1}]")
            a(f"v_add_u32 v{RING}, 1024, v{RING}")
        a.label(f"{N}_nocpf")
    a(f"s_add_u32 s{sT0}, s{sCG}, 16")
    a(f"s_cmp_eq_u32 s{sRole}, 0")
    a(f"s_cselect_b32 s{sTagOff}, s{sT0}, s{sM}")
    a(f"s_cselect_b32 s{sT0}, s{sM}, s{sCG}")
    a(f"s_lshl_b32 s{sTagOff}, s{sTagOff}, 2")
    a(f"s_lshr_b32 s{sT1}, s{sRole}, 1")
    a(f"s_or_b32 s{sT0}, s{sT0}, s{sT1}")
    a(f"s_or_b32 s{sT0}, s{sT0}, s{sW8}")
    a(f"s_cmp_eq_u32 s{sT0}, 0")
    a(f"s_cbranch_scc1 {N}_nonce")
    a.label(f"{N}_nonceback")
    a(f"s_mov_b32 s{sT3}, {D*F*2+4096}")
    a(f"s_movk_i32 s{sT2}, 9216")
    a(f"s_cmp_eq_u32 s{sRole}, 0")
    a(f"s_cselect_b32 s8, s{KP+2}, s{KP+4}")
    a(f"s_cselect_b32 s9, s{KP+3}, s{KP+5}")
    a(f"s_cselect_b32 s10, {D*3*D*2+4096}, s{sT3}")
    a(f"s_cselect_b32 s{sT4}, 3456, s{sT2}")
    a(f"s_and_b32 s9, s9, 0xffff")
    a("s_sub_u32 s8, s8, 4096")
    a("s_subb_u32 s9, s9, 0")
    a("s_mov_b32 s11, 0x00020000")
    a(f"s_lshl_b32 s{sStep}, s{sT4}, 6")
    a(f"s_mul_i32 s{sT0}, s{sCG}, 288")
    a(f"s_lshl_b32 s{sT1}, s{sCG}, 2")
    a(f"s_cmp_eq_u32 s{sRole}, 0")
    a(f"s_cbranch_scc0 {N}_rz")
    a(f"s_add_u32 s{sCol[0]}, s{sT0}, 1152")
    a(f"s_add_u32 s{sCol[1]}, s{sT0}, 2304")
    a(f"s_mov_b32 s{sCol[2]}, s{sT0}")
    for i in range(3):
        a(f"s_mov_b32 s{sNt[i]}, s{sCG}")
    a(f"s_branch {N}_rdone")
    a.label(f"{N}_rz")
    a(f"s_cmp_eq_u32 s{sRole}, 1")
    a(f"s_cbranch_scc0 {N}_rc")
    a(f"s_mov_b32 s{sNt[0]}, s{sT1}")
    a(f"s_add_u32 s{sNt[1]}, s{sT1}, 1")
    a(f"s_mov_b32 s{sNt[2]}, 0")
    a(f"s_mul_i32 s{sCol[0]}, s{sNt[0]}, 288")
    a(f"s_add_u32 s{sCol[0]}, s{sCol[0]}, 4608")
    a(f"s_add_u32 s{sCol[1]}, s{sCol[0]}, 288")
    a(f"s_mov_b32 s{sCol[2]}, {OOB}")
    a(f"s_branch {N}_rdone")
    a.label(f"{N}_rc")
    a(f"s_add_u32 s{sNt[0]}, s{sT1}, s{sRole}")
    a(f"s_sub_u32 s{sT2}, s{sRole}, 2")
    a(f"s_lshl_b32 s{sT2}, s{sT2}, 1")
    a(f"s_add_u32 s{sNt[1]}, s{sT1}, s{sT2}")
    a(f"s_add_u32 s{sNt[2]}, s{sNt[1]}, 1")
    a(f"s_mul_i32 s{sCol[0]}, s{sNt[0]}, 288")
    a(f"s_add_u32 s{sCol[0]}, s{sCol[0]}, 4608")
    a(f"s_mul_i32 s{sCol[1]}, s{sNt[1]}, 288")
    a(f"s_add_u32 s{sCol[2]}, s{sCol[1]}, 288")
    a.label(f"{N}_rdone")
    t0, t1, t2, t3 = RING, RING+1, RING+2, RING+3
    a(f"s_mul_i32 s{sT0}, s{sW4}, 320")
    a(f"v_mov_b32 v{t3}, {OOB}")
    for p in range(5):
        a(f"v_add_u32 v{t0}, s{sT0}, v{vT+3}")
        if p:
            a(f"v_add_u32 v{t0}, {64*p}, v{t0}")
        a(f"v_mul_u32_u24 v{t1}, 3277, v{t0}")
        a(f"v_lshrrev_b32 v{t1}, 16, v{t1}")
        a(f"v_mul_u32_u24 v{t2}, 20, v{t1}")
        a(f"v_sub_u32 v{t0}, v{t0}, v{t2}")
        a(f"v_bfe_u32 v{t2}, v{t1}, 3, 1")
        a(f"v_lshlrev_b32 v{t2}, 1, v{t2}")
        a(f"v_sub_u32 v{t0}, v{t0}, v{t2}")
        a(f"v_cmp_gt_u32 vcc, 18, v{t0}")
        a(f"v_mul_lo_u32 v{t1}, v{t1}, s{sT4}")
        a(f"v_lshl_add_u32 v{t1}, v{t0}, 4, v{t1}")
        a(f"v_add_u32 v{t1}, {4096 - (p % 4)*1024}, v{t1}")
        a(f"v_cndmask_b32 v{VD+p}, v{t3}, v{t1}, vcc")
    a(f"s_mul_i32 s{sDoff}, s{sG}, s{sStep}")
    a(f"s_add_u32 s{sDoff}, s{sDoff}, s{sCol[0]}")
    a(f"s_and_b32 s{sT0}, s{sM}, 7")
    a(f"s_mul_i32 s{sT1}, s{sT0}, s{sStep}")
    a(f"s_add_u32 s{sT2}, s{sCol[0]}, s{sT1}")
    a(f"s_add_u32 s{sWp+1}, s{sCol[1]}, s{sT1}")
    a(f"s_add_u32 s{sPf}, s{sCol[2]}, s{sT1}")
    a(f"s_mov_b32 s{sT3}, {OOB}")
    for t in range(3):
        a(f"s_cmp_eq_u32 s{sT0}, {t}")
        a(f"s_cselect_b32 s{sT3}, s{sCol[t]}, s{sT3}")
    a(f"s_lshl_b32 s{sT1}, s{sStep}, 3")
    a(f"s_add_u32 s{sT3}, s{sT3}, s{sT1}")
    a(f"s_cmp_eq_u32 s{sG}, 0")
    a(f"s_cselect_b32 s{sWp}, s{sT2}, s{sT3}")
    lane_cg(t0, t1)
    a(f"v_lshrrev_b32 v{t2}, 2, v{t0}")
    a(f"v_lshl_add_u32 v{t2}, v{t1}, 3, v{t2}")
    a(f"v_mul_u32_u24 v{t2}, 320, v{t2}")
    a(f"v_and_b32 v{t3}, 1, v{t1}")
    a(f"v_lshl_add_u32 v{t2}, v{t3}, 5, v{t2}")
    a(f"v_and_b32 v{t3}, 3, v{t0}")
    a(f"v_lshl_add_u32 v{vRdB}, v{t3}, 3, v{t2}")
    a(f"v_lshrrev_b32 v{t2}, 3, v{t0}")
    a(f"v_mul_u32_u24 v{t2}, 9216, v{t2}")
    a(f"v_and_b32 v{t3}, 7, v{t0}")
    a(f"v_lshl_add_u32 v{t2}, v{t3}, 7, v{t2}")
    a(f"v_xor_b32 v{t3}, v{t3}, v{t1}")
    a(f"v_lshl_add_u32 v{t2}, v{t3}, 4, v{t2}")
    a(f"s_mul_i32 s{sT0}, s{sW4}, 36864")
    a(f"v_add_u32 v{t2}, s{sT0}, v{t2}")
    a(f"v_xor_b32 v{t3}, 64, v{t2}")
    a(f"v_mov_b32 v{vT+1}, {LFLAG}")
    a(f"v_mov_b32 v{vT+2}, 0")
    a(f"v_mov_b32 v{vT+3}, 0")
    a(f"ds_write_b64 v{vT+1}, {pr(vT+2)}")
    a(f"s_waitcnt vmcnt(0) lgkmcnt(0)")
    a("s_barrier")
    st.mark(1)
    a(f"s_cmp_eq_u32 s{sG}, 1")
    a(f"s_cbranch_scc1 {N}_g1")
    SS = ACC + 24
    LNP = ACC + 32
    NT = RING + 8
    def ln_phase(j):
        for ks in range(18):
            a(f"ds_read_b128 {r4(xa(j,ks))}, v{t2 + (ks&1)} offset:{j*18432 + (ks>>1)*1024}")
            if ks == 11:
                a("s_waitcnt lgkmcnt(6)")
        extra = [f"buffer_load_dwordx4 {r4(ACC+4*p)}, v{VD+p}, s[8:11], s{sDoff} offen offset:{(p%4)*1024}" for p in range(5)]
        late = []
        if wpf:
            for sreg in ((sWp, sPf) if j == 0 else (sWp+1, sWp)):
                late += [f"buffer_load_dwordx4 v{VD+p}, s[8:11], s{sreg} offen offset:{(p%4)*1024} lds" for p in range(5)]
            a(f"s_mov_b32 m0, {LJUNK}")
        if j == 0:
            a(f"v_mov_b32 v{vT+1}, 0")
            late.append(f"buffer_load_dword v{vT}, v{vT+1}, s[16:19], s{sTagOff} offen sc1")
        nwp = len(late)
        for i in range(4):
            a(f"v_mov_b32 v{SS+i}, 0")
        for ks in range(18):
            if extra:
                a(extra.pop(0))
            elif late and ks % 4 == 1:
                a(late.pop(0))
            if ks in (0, 6, 12):
                a(f"s_waitcnt lgkmcnt({12 if ks == 0 else 6 if ks == 6 else 0})")
            for r in range(4):
                x = xa(j, ks) + r
                o = 2 if (r & 1) else 0
                a(f"v_dot2c_f32_bf16 v{SS+o}, s{sOnes}, v{x}")
                a(f"v_dot2c_f32_bf16 v{SS+o+1}, v{x}, v{x}")
        a("s_nop 3")
        for i in range(2):
            a(f"v_add_f32 v{SS+i}, v{SS+i}, v{SS+2+i}")
        xreduce(a, SS, 2)
        inv = f2h(1.0/576)
        a(f"v_mul_f32 v{SS}, {inv}, v{SS}")
        a(f"v_mul_f32 v{SS+1}, {inv}, v{SS+1}")
        a(f"v_fma_f32 v{SS+1}, -v{SS}, v{SS}, v{SS+1}")
        a(f"v_max_f32 v{SS+1}, 0, v{SS+1}")
        a(f"v_add_f32 v{SS+1}, 0x3727c5ac, v{SS+1}")
        a(f"v_rsq_f32 v{LNP}, v{SS+1}")
        a("s_nop 0")
        a(f"v_mul_f32 v{LNP}, s{sGC+1}, v{LNP}")
        a(f"v_mul_f32 v{LNP+1}, v{SS}, v{LNP}")
        a(f"v_sub_f32 v{LNP+1}, 0, v{LNP+1}")
        for ks in range(18):
            x = xa(j, ks)
            for r in range(4):
                a(f"v_lshlrev_b32 v{NT+2*r}, 16, v{x+r}")
                a(f"v_and_b32 v{NT+2*r+1}, 0xffff0000, v{x+r}")
            for r in range(4):
                a(f"v_pk_fma_f32 {pr(NT+2*r)}, {pr(NT+2*r)}, {pr(LNP)}, {pr(LNP)} op_sel:[0,0,1] op_sel_hi:[1,0,1]")
            for r in range(4):
                a(f"v_cvt_pk_bf16_f32 v{x+r}, v{NT+2*r}, v{NT+2*r+1}")
            a(f"ds_write_b128 v{t2 + (ks&1)}, {r4(x)} offset:{j*18432 + (ks>>1)*1024}")
            if late and ks % 2 == 0:
                a(late.pop(0))
        a("s_waitcnt lgkmcnt(0)")
        a("s_barrier")
        for ks in range(18):
            a(f"ds_read_b128 {r4(xa(1-j,ks))}, v{t2 + (ks&1)} offset:{(1-j)*18432 + (ks>>1)*1024}")
            if ks == 11:
                a("s_waitcnt lgkmcnt(4)")
        a(f"s_add_u32 s{sT0}, s{sWm0}, {j*WSLOT}")
        a(f"v_add_u32 v{vRd}, s{sT0}, v{vL16}")
        a(f"s_waitcnt vmcnt({nwp}) lgkmcnt(0)")
        a("s_barrier")
        for p in range(5):
            a(f"ds_write_b128 v{vRd}, {r4(ACC+4*p)} offset:{p*1024}")
    ln_phase(0)
    a(f"s_setprio {pm}")
    st.mark(2)
    a("s_waitcnt lgkmcnt(0)")
    a("s_barrier")
    a(f"s_mov_b32 s{sRslot}, 0")
    a(f"s_cmp_eq_u32 s{sRole}, 0")
    a(f"s_cbranch_scc1 {N}_g0a")
    call("main1")
    a(f"s_branch {N}_g0b")
    a.label(f"{N}_g0a")
    call("main0")
    a.label(f"{N}_g0b")
    a(f"s_mov_b32 s{sFirst}, 0")
    st.mark(3)
    a(f"s_cmp_eq_u32 s{sW4}, 1")
    a(f"s_cbranch_scc1 {N}_nonce2")
    a.label(f"{N}_nonce2back")
    a(f"s_setprio {ps}")
    a(f"s_mov_b32 s{sDslot}, 0")
    a(f"s_mul_i32 s{sDoff}, s{sStep}, 3")
    a(f"s_add_u32 s{sDoff}, s{sDoff}, s{sCol[1]}")
    a(f"s_mov_b32 s{sColNext}, s{sCol[2]}")
    a(f"s_mov_b32 s{sN}, s{sNt[0]}")
    a(f"s_mov_b32 s{sPark}, {PARK0}")
    srd(a, PFS, 60, FH*D*2)
    a(f"s_mul_i32 s{sPf}, s2, 12288")
    a(f"s_lshl_b32 s{sT0}, s{sW4}, 10")
    a(f"s_add_u32 s{sPf}, s{sPf}, s{sT0}")
    a(f"s_cmp_eq_u32 s{sRole}, 0")
    a(f"s_cbranch_scc1 {N}_g0q")
    call("epi_z2_side")
    st.mark(4)
    a(f"s_cmp_eq_u32 s{sRole}, 1")
    a(f"s_cbranch_scc0 {N}_g0t2")
    call("final")
    a(f"s_branch {N}_done")
    a.label(f"{N}_g0q")
    call("epi_k_side")
    get_tag()
    st.mark(4)
    a.label(f"{N}_g0t2")
    a(f"s_setprio {pm}")
    a(f"s_mov_b32 s{sRslot}, {2*WSLOT}")
    a(f"s_or_b32 s{sT0}, s{sW4}, s{sRole}")
    a(f"s_cmp_eq_u32 s{sT0}, 0")
    a(f"s_cselect_b32 s{sPubW}, 1, 0")
    call("main1")
    st.mark(5)
    a(f"s_mov_b32 s{sN}, s{sNt[2]}")
    a(f"s_cmp_eq_u32 s{sRole}, 0")
    a(f"s_cbranch_scc1 {N}_g0q2")
    call("epi_z1_solo")
    a(f"s_branch {N}_done")
    a.label(f"{N}_g0q2")
    call("epi_q")
    a(f"s_branch {N}_done")
    a.label(f"{N}_g1")
    ln_phase(1)
    a(f"s_mov_b32 s{sDslot}, {2*WSLOT}")
    a(f"s_add_u32 s{sDoff}, s{sDoff}, s{sStep}")
    a(f"s_mov_b32 s{sColNext}, s{sCol[1]}")
    dma_issue()
    st.mark(2)
    a("s_waitcnt lgkmcnt(0)")
    a("s_barrier")
    sd = Side(False, ["D2"]*5)
    a(f"s_lshl_b32 s{sPf}, s2, 15")
    a(f"s_lshl_b32 s{sT0}, s{sW4}, 10")
    a(f"s_add_u32 s{sPf}, s{sPf}, s{sT0}")
    for s in range(9):
        sd.slot(s, extra=(pf_group(vT) if (pf2 and s >= 1) else None))
    sd.finish()
    st.mark(3)
    a(f"s_setprio {pm}")
    a(f"s_mov_b32 s{sRslot}, {WSLOT}")
    a(f"s_cmp_eq_u32 s{sRole}, 0")
    a(f"s_cbranch_scc1 {N}_g1a")
    call("main1")
    a(f"s_branch {N}_g1b")
    a.label(f"{N}_g1a")
    call("main0")
    a.label(f"{N}_g1b")
    st.mark(4)
    a(f"s_setprio {ps}")
    a(f"s_mov_b32 s{sDslot}, {WSLOT}")
    a(f"s_mul_i32 s{sDoff}, s{sStep}, 3")
    a(f"s_add_u32 s{sDoff}, s{sDoff}, s{sCol[2]}")
    a(f"s_mov_b32 s{sColNext}, {OOB}")
    a(f"s_mov_b32 s{sN}, s{sNt[1]}")
    a(f"s_mov_b32 s{sPark}, {PARK1}")
    a(f"s_cmp_eq_u32 s{sRole}, 0")
    a(f"s_cbranch_scc1 {N}_epi_v")
    a(f"s_cmp_eq_u32 s{sRole}, 1")
    a(f"s_cbranch_scc0 {N}_g1z1")
    call("epi_z2_solo")
    st.mark(5)
    call("final")
    a(f"s_branch {N}_done")
    a.label(f"{N}_g1z1")
    call("epi_z1_side")
    st.mark(5)
    a(f"s_mov_b32 s{sN}, s{sNt[0]}")
    a(f"s_mov_b32 s{sPark}, {PARK0}")
    call("final")
    for b in range(9):
        if b % 4 == 0 and b:
            a(f"s_add_u32 s{sZ1}, s{sZ1}, 4096")
        a(f"buffer_store_dwordx4 {r4(acc(0,b))}, v{vL16}, s[12:15], s{sZ1} offen offset:{(b%4)*1024}{wt}")
    a.label(f"{N}_done")
    st.mark(6)
    if stamps:
        a("s_waitcnt vmcnt(0)")
    st.mark(7)
    st.markrt(9)
    st.dump(10, sW8, vT, vT+1)
    a.label(f"{N}_end")
    a("s_endpgm")

    for orient in range(2):
        a.raw(".p2align 6")
        a.label(f"{N}_main{orient}")
        a(f"v_add_u32 v{vRd}, s{sRslot}, v{vRdB}")
        def rd(gi, hs=(0, 1)):
            s, n = divmod(gi, 18)
            kl, b = divmod(n, 9)
            f = RING + (gi % 7) * 4
            for h in hs:
                if exp == "noread":
                    continue
                a(f"{'ds_read_b64' if exp == 'plain' else 'ds_read_b64_tr_b16'} {pr(f+2*h)}, v{vRd} offset:{kl*10240 + h*1280 + b*32}")
        for gi in range(DLOOK):
            rd(gi)
        for gi in range(162):
            s, n = divmod(gi, 18)
            kl, b = divmod(n, 9)
            ks = 2*s + kl
            if n == 18 - DLOOK:
                a(f"s_add_u32 s{sRslot}, s{sRslot}, {WSLOT}")
                a(f"s_cmp_ge_u32 s{sRslot}, {WSLOT*NRING}")
                a(f"s_cselect_b32 s{sRslot}, 0, s{sRslot}")
                if s in (0, 1):
                    a(f"s_cmp_eq_u32 s{sFirst}, 1")
                    a(f"s_cbranch_scc1 {N}_nw{orient}{s}")
                    a(f"s_waitcnt vmcnt({ {0: 6, 1: 1}[s] })")
                    a.label(f"{N}_nw{orient}{s}")
                a("s_barrier")
                if s == fs-1 and orient == 1:
                    a(f"s_cmp_eq_u32 s{sPubW}, 1")
                    a(f"s_cbranch_scc1 {N}_mflag")
                    a.label(f"{N}_mflagback")
                if s < 8:
                    a(f"v_add_u32 v{vRd}, s{sRslot}, v{vRdB}")
            if exp.startswith("w"):
                G = int(exp[1:])
                if gi % G == 0:
                    a(f"s_waitcnt lgkmcnt({max(0, min(2*(DLOOK-G), 2*(161-(gi+G-1))))})")
            else:
                a(f"s_waitcnt lgkmcnt({min(2*(DLOOK-1), 2*(161-gi))})")
            f = RING + (gi % 7) * 4
            for j in range(2):
                C = r4(acc(j, b)) if ks else "0"
                if exp == "nomfma":
                    pass
                elif orient == 0:
                    a(f"v_mfma_f32_16x16x32_bf16 {r4(acc(j,b))}, {r4(xa(j,ks))}, {r4(f)}, {C}")
                else:
                    a(f"v_mfma_f32_16x16x32_bf16 {r4(acc(j,b))}, {r4(f)}, {r4(xa(j,ks))}, {C}")
                if gi + DLOOK < 162:
                    rd(gi + DLOOK, (j,))
        a("s_nop 7")
        ret()

    def gelu8(a, A, T, pk):
        if pk:
            for i in range(4):
                a(f"v_pk_fma_f32 {pr(T+2*i)}, {pr(A+2*i)}, {pr(A+2*i)}, s[{sGC}:{sGC+1}] op_sel_hi:[1,1,0] neg_lo:[1,0,0] neg_hi:[1,0,0]")
            for i in range(4):
                a(f"v_pk_mul_f32 {pr(T+2*i)}, {pr(T+2*i)}, {pr(A+2*i)}")
            for i in range(4):
                a(f"v_exp_f32 v{T+2*i}, v{T+2*i}")
                a(f"v_exp_f32 v{T+2*i+1}, v{T+2*i+1}")
                if i:
                    a(f"v_pk_add_f32 {pr(T+2*i-2)}, {pr(T+2*i-2)}, 1.0 op_sel_hi:[1,0]")
            a(f"v_rcp_f32 v{T}, v{T}")
            a(f"v_pk_add_f32 {pr(T+6)}, {pr(T+6)}, 1.0 op_sel_hi:[1,0]")
            a(f"v_rcp_f32 v{T+1}, v{T+1}")
            for i in range(1, 4):
                a(f"v_rcp_f32 v{T+2*i}, v{T+2*i}")
                a(f"v_pk_mul_f32 {pr(A+2*i-2)}, {pr(A+2*i-2)}, {pr(T+2*i-2)}")
                a(f"v_rcp_f32 v{T+2*i+1}, v{T+2*i+1}")
            a("s_nop 0")
            a(f"v_pk_mul_f32 {pr(A+6)}, {pr(A+6)}, {pr(T+6)}")
        else:
            for i in range(8):
                a(f"v_fma_f32 v{T+i}, -v{A+i}, v{A+i}, s{sGC}")
            for i in range(8):
                a(f"v_mul_f32 v{T+i}, v{A+i}, v{T+i}")
            for i in range(8):
                a(f"v_exp_f32 v{T+i}, v{T+i}")
                if i:
                    a(f"v_add_f32 v{T+i-1}, 1.0, v{T+i-1}")
            a(f"v_rcp_f32 v{T}, v{T}")
            a(f"v_add_f32 v{T+7}, 1.0, v{T+7}")
            for i in range(1, 8):
                a(f"v_rcp_f32 v{T+i}, v{T+i}")
                a(f"v_mul_f32 v{A+i-1}, v{A+i-1}, v{T+i-1}")
            a("s_nop 0")
            a(f"v_mul_f32 v{A+7}, v{A+7}, v{T+7}")
    def phi8(a, A, T, pk):
        for i in range(8):
            a(f"v_min_f32 v{T+i}, 0, v{A+i}")
        if pk:
            for i in range(4):
                a(f"v_pk_mul_f32 {pr(T+2*i)}, {pr(T+2*i)}, s[{sL2E}:{sL2E+1}] op_sel_hi:[1,0]")
        else:
            for i in range(8):
                a(f"v_mul_f32 v{T+i}, s{sL2E}, v{T+i}")
        for i in range(8):
            a(f"v_exp_f32 v{T+i}, v{T+i}")
            a(f"v_max_f32 v{A+i}, 0, v{A+i}")
        if pk:
            for i in range(4):
                a(f"v_pk_add_f32 {pr(A+2*i)}, {pr(A+2*i)}, s[{sL2E}:{sL2E+1}] op_sel:[0,1] op_sel_hi:[1,1]")
            for i in range(4):
                a(f"v_pk_add_f32 {pr(A+2*i)}, {pr(A+2*i)}, {pr(T+2*i)}")
        else:
            for i in range(8):
                a(f"v_add_f32 v{A+i}, s{sL2E+1}, v{A+i}")
            for i in range(8):
                a(f"v_add_f32 v{A+i}, v{A+i}, v{T+i}")
    def pack8(a, A, P):
        for i in range(4):
            a(f"v_cvt_pk_bf16_f32 v{P+i}, v{A+2*i}, v{A+2*i+1}")
    TMP = RING
    STA = RING + 8
    sched9 = [[i] for i in range(9)]
    ONE = RING + 24
    def pf_extra(s):
        if not pf2:
            return None
        if s in (1, 2, 3):
            return pf_group(XJ)
        if s == 4:
            return [f"s_mov_b32 s{PFS}, s62", f"s_and_b32 s{PFS+1}, s63, 0xffff", f"s_mov_b32 s{PFS+2}, {D*D*2}",
                    f"s_lshl_b32 s{sPf}, s2, 12", f"s_lshl_b32 s{sT4}, s{sW4}, 10", f"s_add_u32 s{sPf}, s{sPf}, s{sT4}"] + pf_group(XJ)
        return None

    for solo in (False, True):
        a.raw(".p2align 6")
        a.label(f"{N}_epi_z2_{'solo' if solo else 'side'}")
        sd = Side(solo)
        for s in range(9):
            b_ = Asm()
            if s == 0:
                lane_cg(vT, vT+1, b_)
                b_(f"v_mul_u32_u24 v{vRd}, {PP}, v{vT}")
                b_(f"v_lshl_add_u32 v{vRd}, v{vT+1}, 3, v{vRd}")
                b_(f"s_mul_i32 s{sT0}, s{sW4}, {32*PP}")
                b_(f"s_add_u32 s{sT0}, s{sT0}, s{sPark}")
                b_(f"v_add_u32 v{vRd}, s{sT0}, v{vRd}")
            if s == 0:
                for r in range(4):
                    b_(f"v_mov_b32 v{ONE+r}, s{sOnes}")
            for b in sched9[s]:
                A = acc(0, b)
                gelu8(b_, A, TMP, solo)
                pb, h = ACC + 16*(b//2), b % 2
                for j in range(2):
                    for q in range(2):
                        b_(f"v_cvt_pk_bf16_f32 v{pb+4*j+2*h+q}, v{A+4*j+2*q}, v{A+4*j+2*q+1}")
                if b == 8:
                    for j in range(2):
                        b_(f"v_mov_b32 v{pb+4*j+2}, 0")
                        b_(f"v_mov_b32 v{pb+4*j+3}, 0")
                for j in range(2):
                    b_(f"ds_write_b64 v{vRd}, {pr(pb+4*j+2*h)} offset:{j*16*PP + b*32}")
                if h == 1 or b == 8:
                    for j in range(2):
                        C1 = r4(STA+8*j) if b > 1 else "0"
                        C2 = r4(STA+8*j+4) if b > 1 else "0"
                        b_(f"v_mfma_f32_16x16x32_bf16 {r4(STA+8*j)}, {r4(ONE)}, {r4(pb+4*j)}, {C1}")
                        b_(f"v_mfma_f32_16x16x32_bf16 {r4(STA+8*j+4)}, {r4(pb+4*j)}, {r4(pb+4*j)}, {C2}")
            sd.slot(s, b_, extra=pf_extra(s), lgkm=(s == 8))
        sd.finish(pad=False)
        a("s_nop 3")
        lane_cg(vT, vT+1, a)
        a(f"v_and_b32 v{vT+2}, 3, v{vT}")
        for q in range(1, 4):
            a(f"v_cmp_eq_u32 vcc, {q}, v{vT+2}")
            a("s_nop 1")
            for j in range(2):
                a(f"v_cndmask_b32 v{STA+8*j+4}, v{STA+8*j+4}, v{STA+8*j+4+q}, vcc")
        a(f"v_lshrrev_b32 v{vT+2}, 2, v{vT}")
        a(f"v_lshlrev_b32 v{vT+2}, 6, v{vT+2}")
        a(f"v_lshl_add_u32 v{vT+2}, v{vT}, 2, v{vT+2}")
        for j in range(2):
            a(f"ds_bpermute_b32 v{STA+8*j+1}, v{vT+2}, v{STA+8*j+4}")
        get_tag()
        a(f"v_mov_b32 v{vT+3}, {OOB}")
        a(f"v_cmp_gt_u32 vcc, 2, v{vT+1}")
        a(f"s_lshl_b32 s{sT0}, s{sM}, 4")
        a(f"s_add_u32 s{sT0}, s{sT0}, s{sN}")
        a(f"v_cndmask_b32 v{vT+2}, v{vT+3}, v{vL16}, vcc")
        a(f"v_cmp_eq_u32 vcc, 1, v{vT+1}")
        a(f"s_lshl_b32 s{sT0}, s{sT0}, 2")
        a(f"s_add_u32 s{sT0}, s{sT0}, s{sW4}")
        a(f"v_cndmask_b32 v{STA}, v{STA}, v{STA+8}, vcc")
        a(f"v_cndmask_b32 v{STA+1}, v{STA+1}, v{STA+9}, vcc")
        a(f"v_mov_b32 v{STA+2}, s{sTag}")
        a(f"v_mov_b32 v{STA+3}, s{sTag+1}")
        a(f"s_lshl_b32 s{sT0}, s{sT0}, 9")
        a(f"s_add_u32 s{sT0}, s{sT0}, {WS_ST}")
        a(f"buffer_store_dwordx4 {r4(STA)}, v{vT+2}, s[12:15], s{sT0} offen sc1")
        ret()

    a.raw(".p2align 6")
    a.label(f"{N}_epi_k_side")
    sd = Side(False)
    for s in range(9):
        b_ = Asm()
        if s == 0:
            b_(f"s_lshl_b32 s{sT0}, s{sW4}, 10")
            b_(f"s_add_u32 s{sT0}, s{sT0}, s{sPark}")
            b_(f"v_add_u32 v{vRd}, s{sT0}, v{vL16}")
        A = acc(0, s)
        phi8(b_, A, TMP, False)
        pack8(b_, A, A)
        b_(f"ds_write_b128 v{vRd}, {r4(A)} offset:{s*4096}")
        sd.slot(s, b_, extra=pf_extra(s), lgkm=(s == 8))
    sd.finish()
    ret()

    for solo in (False, True):
        a.raw(".p2align 6")
        a.label(f"{N}_epi_z1_{'solo' if solo else 'side'}")
        sd = Side(solo, last=True)
        for s in range(9):
            b_ = Asm()
            if s == 0:
                b_(f"s_lshl_b32 s{sT2}, s{sM}, 4")
                b_(f"s_add_u32 s{sT2}, s{sT2}, s{sN}")
                b_(f"s_lshl_b32 s{sT2}, s{sT2}, 2")
                b_(f"s_add_u32 s{sT2}, s{sT2}, s{sW4}")
                b_(f"s_mul_i32 s{sT2}, s{sT2}, 9216")
                b_(f"s_add_u32 s{sT2 if solo else sZ1}, s{sT2}, {WS_Z1}")
            A = acc(0, s)
            gelu8(b_, A, TMP, solo)
            pack8(b_, A, A)
            if solo:
                if s % 4 == 0 and s:
                    b_(f"s_add_u32 s{sT2}, s{sT2}, 4096")
                b_(f"buffer_store_dwordx4 {r4(A)}, v{vL16}, s[12:15], s{sT2} offen offset:{(s%4)*1024}{wt}")
            if s == es and not solo:
                b0 = Asm()
                stat_loads(b0)
                b0(f"s_mov_b32 s{sEarly}, 1")
                b_.lines = b0.lines + b_.lines
            if s == 6 and not solo and ep:
                b0 = Asm()
                b0(f"s_cmp_lg_u32 s{sW4}, 0")
                b0(f"s_cbranch_scc1 {N}_ep0")
                b0(f"s_lshl_b32 s{sT0}, s{sM}, 4")
                b0(f"v_mov_b32 v{vT+2}, 0")
                b0(f"buffer_load_dwordx4 {r4(STA)}, v{vT+2}, s[16:19], s{sT0} offen sc1 ;nc")
                b0.label(f"{N}_ep0")
                for l in b0.lines:
                    a.raw(l)
            if s == 8 and not solo and ep:
                b_(f"s_cmp_lg_u32 s{sW4}, 0")
                b_(f"s_cbranch_scc1 {N}_ep1")
                b_(f"v_and_b32 v{STA}, v{STA}, v{STA+1}")
                b_("s_nop 0")
                b_(f"v_and_b32 v{STA+2}, v{STA+2}, v{STA+3}")
                b_("s_nop 0")
                b_(f"v_and_b32 v{STA}, v{STA}, v{STA+2}")
                b_("s_nop 0")
                b_(f"v_readfirstlane_b32 s{sT1}, v{STA}")
                b_(f"s_and_b32 s{sT1}, s{sT1}, 0x01010100")
                b_(f"s_cmp_lg_u32 s{sT1}, 0x01010100")
                b_(f"s_cbranch_scc1 {N}_ep1")
                b_(f"v_mov_b32 v{STA}, 1")
                b_("s_nop 0")
                b_(f"v_mov_b32 v{STA+1}, {LFLAG}")
                b_(f"ds_write_b32 v{STA+1}, v{STA}")
                b_.label(f"{N}_ep1")
            sd.slot(s, b_, lgkm=(s == 8))
        ret()

    a.raw(".p2align 6")
    a.label(f"{N}_epi_q")
    lane_cg(vT, vT+1)
    a(f"v_lshlrev_b32 v{vRd}, 6, v{vT}")
    a(f"v_lshl_add_u32 v{vRd}, v{vT+1}, 4, v{vRd}")
    a(f"s_mul_i32 s{sT2}, s{sN}, {5*PLANE}")
    a(f"s_lshl_b32 s{sT3}, s{sM}, 13")
    a(f"s_add_u32 s{sT2}, s{sT2}, s{sT3}")
    a(f"s_lshl_b32 s{sT3}, s{sW4}, 11")
    a(f"s_add_u32 s{sT2}, s{sT2}, s{sT3}")
    a(f"s_add_u32 s{sT2}, s{sT2}, {WS_PQ}")
    QO = RING + 8
    for p in range(5):
        Q = QO + (p % 2) * 8
        for h in range(2):
            b = 2*p + h
            if b < 9:
                A = acc(0, b)
                phi8(a, A, TMP, True)
                for j in range(2):
                    a(f"v_cvt_pk_bf16_f32 v{Q+j*4+h*2}, v{A+j*4}, v{A+j*4+1}")
                    a(f"v_cvt_pk_bf16_f32 v{Q+j*4+h*2+1}, v{A+j*4+2}, v{A+j*4+3}")
            else:
                for j in range(2):
                    a(f"v_mov_b32 v{Q+j*4+2}, 0")
                    a(f"v_mov_b32 v{Q+j*4+3}, 0")
        for j in range(2):
            swap_pair(a, Q + j*4)
            a(f"buffer_store_dwordx4 {r4(Q+j*4)}, v{vRd}, s[12:15], s{sT2} offen offset:{j*1024}{wt}")
        a(f"s_add_u32 s{sT2}, s{sT2}, {PLANE}")
    ret()

    a.raw(".p2align 6")
    a.label(f"{N}_final")
    lane_cg(vT, vT+1)
    a(f"v_lshrrev_b32 v{vT+2}, 2, v{vT}")
    a(f"v_lshl_add_u32 v{vT+2}, v{vT+1}, 3, v{vT+2}")
    a(f"v_mul_u32_u24 v{vT+2}, {PP}, v{vT+2}")
    a(f"v_and_b32 v{vT+3}, 3, v{vT}")
    a(f"v_lshl_add_u32 v{vT+2}, v{vT+3}, 3, v{vT+2}")
    a(f"s_mul_i32 s{sT0}, s{sW4}, {32*PP}")
    a(f"s_add_u32 s{sT0}, s{sT0}, s{sPark}")
    a(f"v_add_u32 v{vRd}, s{sT0}, v{vT+2}")
    for b in range(9):
        for h in range(2):
            a(f"ds_read_b64_tr_b16 {pr(XA+4*b+2*h)}, v{vRd} offset:{h*4*PP + b*32}")
        if b == 5:
            a("s_waitcnt lgkmcnt(4)")
    if fine: st.mark(1)
    get_tag()
    RS = XA + 40
    a(f"s_mov_b32 s{sSpin}, 0")
    a(f"s_cmp_eq_u32 s{sEarly}, 1")
    a(f"s_cbranch_scc1 {N}_fhave")
    a.label(f"{N}_fload")
    stat_loads(a)
    a.label(f"{N}_fhave")
    a(f"v_and_b32 v{vT+3}, 0x1f0, v{vL16}")
    a(f"s_and_b32 s{sT1}, s{sW4}, 1")
    a(f"s_lshl_b32 s{sT1}, s{sT1}, 2")
    a(f"v_or_b32 v{TMP+3}, s{sT1}, v{vT+1}")
    a(f"v_and_b32 v{TMP+4}, 7, v{vT}")
    a(f"v_xor_b32 v{TMP+3}, v{TMP+3}, v{TMP+4}")
    a(f"v_lshlrev_b32 v{TMP+3}, 4, v{TMP+3}")
    a(f"v_lshl_add_u32 v{vRd}, v{vT}, 7, v{TMP+3}")
    a(f"s_lshl_b32 s{sT0}, s{sN}, 5")
    a(f"s_lshl_b32 s{sT1}, s{sM}, 1")
    a(f"s_add_u32 s{sT0}, s{sT0}, s{sT1}")
    a(f"s_lshr_b32 s{sT1}, s{sW4}, 1")
    a(f"s_add_u32 s{sT0}, s{sT0}, s{sT1}")
    a(f"s_mul_i32 s{sT0}, s{sT0}, 18432")
    a(f"s_add_u32 s{sT0}, s{sT0}, {WS_Z2T}")
    a(f"s_lshl_b32 s{sT1}, s{sW8}, 8")
    a(f"s_add_u32 s{sT1}, s{sT1}, {LSTAT}")
    a(f"v_lshrrev_b32 v{TMP+5}, 2, v{vT+3}")
    a(f"v_add_u32 v{TMP+5}, s{sT1}, v{TMP+5}")
    a(f"v_lshlrev_b32 v{TMP+6}, 5, v{vT+1}")
    a(f"v_add_u32 v{TMP+6}, s{sT1}, v{TMP+6}")
    a("s_waitcnt vmcnt(0)")
    if fine: st.mark(2)
    for q in range(8):
        a(f"v_xor_b32 v{GR+4*q+2}, s{sTag}, v{GR+4*q+2}")
        a(f"v_xor_b32 v{GR+4*q+3}, s{sTag+1}, v{GR+4*q+3}")
    for q in range(8):
        if q:
            a(f"v_or3_b32 v{GR+2}, v{GR+2}, v{GR+4*q+2}, v{GR+4*q+3}")
            a(f"v_pk_add_f32 {pr(GR)}, {pr(GR)}, {pr(GR+4*q)}")
        else:
            a(f"v_or_b32 v{GR+2}, v{GR+2}, v{GR+3}")
    a(f"v_cmp_ne_u32 vcc, 0, v{GR+2}")
    a(f"v_mov_b32 v{GR+4}, v{GR}")
    a(f"v_mov_b32 v{GR+5}, v{GR+1}")
    a("s_nop 2")
    a("s_cmp_lg_u64 vcc, 0")
    a(f"s_cbranch_scc1 {N}_fwait")
    a.label(f"{N}_fgo")
    b = Asm(); pend.append(b)
    b.label(f"{N}_fwait")
    b(f"v_lshlrev_b32 v{TMP}, 11, v{vT}")
    b(f"s_cmp_eq_u32 s{sEarly}, 1")
    b(f"s_mov_b32 s{sEarly}, 0")
    b(f"s_cbranch_scc1 {N}_fload")
    b.label(f"{N}_fpoll")
    b(f"s_sleep {pslp}")
    b(f"buffer_load_dword v{TMP+1}, v{TMP}, s[12:15], s{sSt} offen offset:8 sc1")
    b(f"s_add_u32 s{sSpin}, s{sSpin}, 1")
    b("s_waitcnt vmcnt(0)")
    b(f"v_cmp_ne_u32 vcc, s{sTag}, v{TMP+1}")
    b(f"s_cmp_gt_u32 s{sSpin}, 0x20000")
    b(f"s_cbranch_scc1 {N}_fgo")
    b("s_nop 2")
    b("s_cmp_lg_u64 vcc, 0")
    b(f"s_cbranch_scc1 {N}_fpoll")
    b(f"s_branch {N}_fload")
    if fine: st.mark(3)
    a(f"v_permlane32_swap_b32 v{GR}, v{GR+4}")
    a(f"v_permlane32_swap_b32 v{GR+1}, v{GR+5}")
    a("s_nop 1")
    a(f"v_pk_add_f32 {pr(GR)}, {pr(GR)}, {pr(GR+4)}")
    inv = f2h(1.0/2304)
    a(f"v_mul_f32 v{GR}, {inv}, v{GR}")
    a(f"v_mul_f32 v{GR+1}, {inv}, v{GR+1}")
    a(f"v_fma_f32 v{GR+1}, -v{GR}, v{GR}, v{GR+1}")
    a(f"v_max_f32 v{GR+1}, 0, v{GR+1}")
    a(f"v_add_f32 v{GR+1}, {f2h(1e-5*GK*GK)}, v{GR+1}")
    a(f"v_rsq_f32 v{GR+1}, v{GR+1}")
    a("s_nop 0")
    a(f"v_mul_f32 v{GR+1}, {f2h(1.0/GK)}, v{GR+1}")
    a(f"v_mul_f32 v{GR}, v{GR}, v{GR+1}")
    a(f"v_sub_f32 v{GR}, 0, v{GR}")
    a(f"ds_write_b32 v{TMP+5}, v{GR+1}")
    a(f"ds_write_b32 v{TMP+5}, v{GR} offset:128")
    for q in range(4):
        a(f"ds_read_b128 {r4(RS+4*q)}, v{TMP+6} offset:{(q>>1)*128 + (q&1)*16}")
    if prefetch:
        a(f"s_cmp_eq_u32 s{sRole}, 1")
        a(f"s_cselect_b32 s{sT1}, s{sG}, s{sRole}")
        a(f"s_lshl_b32 s{sT2}, s{sM}, 2")
        a(f"s_add_u32 s{sT2}, s{sT2}, s{sCG}")
        a(f"s_lshl_b32 s{sT2}, s{sT2}, 2")
        a(f"s_add_u32 s{sT1}, s{sT1}, s{sT2}")
        a(f"s_lshl_b32 s{sT1}, s{sT1}, 2")
        a(f"s_add_u32 s{sT1}, s{sT1}, s{sW4}")
        a(f"s_lshl_b32 s{sPf}, s{sT1}, 13")
        for i in range(8):
            if i == 4:
                a(f"s_add_u32 s{sPf}, s{sPf}, 4096")
            a(f"buffer_load_dwordx4 {r4(XA+60)}, v{vL16}, s[{PFS}:{PFS+3}], s{sPf} offen offset:{(i%4)*1024}")
        srd(a, PFS, 60, FH*D*2)
        a(f"s_mul_i32 s{sPf}, s{sT1}, 3072")
        for i in range(3):
            a(f"buffer_load_dwordx4 {r4(XA+60)}, v{vL16}, s[{PFS}:{PFS+3}], s{sPf} offen offset:{i*1024}")
        srd(a, PFS, 62, D*D*2)
        a(f"s_lshl_b32 s{sPf}, s{sT1}, 10")
        a(f"buffer_load_dwordx4 {r4(XA+60)}, v{vL16}, s[{PFS}:{PFS+3}], s{sPf} offen")
    a("s_waitcnt lgkmcnt(0)")
    if fine: st.mark(4)
    for b in range(9):
        P = XA + 4*b
        for i in range(4):
            a(f"v_lshlrev_b32 v{TMP+2*i}, 16, v{P+i}")
            a(f"v_and_b32 v{TMP+2*i+1}, 0xffff0000, v{P+i}")
        for i in range(4):
            a(f"v_pk_fma_f32 {pr(TMP+2*i)}, {pr(TMP+2*i)}, {pr(RS+2*i)}, {pr(RS+8+2*i)}")
        pack8(a, TMP, P)
        a(f"buffer_store_dwordx4 {r4(P)}, v{vRd}, s[12:15], s{sT0} offen offset:{(b%2)*2048}{wt}")
        if b % 2:
            a(f"s_add_u32 s{sT0}, s{sT0}, 4096")
    ret()

    a.raw(".p2align 6")
    a.label(f"{N}_epi_v")
    sd = Side(False, last=True)
    b_ = Asm()
    b_(f"s_lshl_b32 s{sT0}, s{sW4}, 10")
    b_(f"s_add_u32 s{sT0}, s{sT0}, {PARK1}")
    b_(f"v_add_u32 v{vRd}, s{sT0}, v{vL16}")
    for b in range(9):
        A = acc(0, b)
        pack8(b_, A, A)
        b_(f"ds_write_b128 v{vRd}, {r4(A)} offset:{b*4096}")
    sd.slot(0, b_, lgkm=True)
    PK = XA; VV = XA + 64; KA = ACC
    b_ = Asm()
    b_(f"s_lshl_b32 s{sT0}, s{sW4}, 13")
    b_(f"s_add_u32 s{sT1}, s{sT0}, {PARK0-4096}")
    b_(f"v_add_u32 v{vT+1}, s{sT1}, v{vL16}")
    b_(f"s_add_u32 s{sT1}, s{sT0}, {PARK1}")
    b_(f"v_add_u32 v{vT+2}, s{sT1}, v{vL16}")
    for i in range(16):
        b_(f"ds_read_b128 {r4(PK+4*i)}, v{vT+1} offset:{i*1024}")
        if i == 11:
            b_("s_waitcnt lgkmcnt(0)")
    b_("s_waitcnt lgkmcnt(0)")
    for i in range(12):
        b_(f"ds_read_b128 {r4(VV+4*i)}, v{vT+2} offset:{i*1024}")
    ON = RING
    for r in range(4):
        b_(f"v_mov_b32 v{ON+r}, 0x3f803f80")
    b_("s_waitcnt lgkmcnt(0)")
    sd.slot(1, b_)
    blocks = [(0,0),(1,0),(2,0),(1,1),(2,1),(3,1),(2,2),(3,2)]
    for half in range(2):
        b_ = Asm()
        for rg in (2*half, 2*half+1):
            for i, (pa, vb) in enumerate(blocks):
                C = r4(KA+4*i) if rg else "0"
                b_(f"v_mfma_f32_16x16x32_bf16 {r4(KA+4*i)}, {r4(PK+(pa*4+rg)*4)}, {r4(VV+(vb*4+rg)*4)}, {C}")
            for i in range(3):
                C = r4(KA+32+4*i) if rg else "0"
                b_(f"v_mfma_f32_16x16x32_bf16 {r4(KA+32+4*i)}, {r4(PK+((1+i)*4+rg)*4)}, {r4(ON)}, {C}")
        if half == 0:
            sd.slot(2, b_)
    b_(f"s_lshl_b32 s{sT0}, s{sCG}, 4")
    b_(f"s_add_u32 s{sT0}, s{sT0}, s{sM}")
    b_(f"s_mul_i32 s{sT0}, s{sT0}, 36864")
    b_(f"s_add_u32 s{sT0}, s{sT0}, {WS_KVP}")
    b_(f"s_mul_i32 s{sT1}, s{sW4}, 6144")
    b_(f"s_add_u32 s{sT1}, s{sT1}, s{sT0}")
    b_(f"s_lshl_b32 s{sT2}, s{sW4}, 11")
    b_(f"s_add_u32 s{sT2}, s{sT2}, s{sT0}")
    b_(f"s_add_u32 s{sT2}, s{sT2}, {27*1024}")
    b_("s_nop 4")
    for i in range(6):
        if i == 4:
            b_(f"s_add_u32 s{sT1}, s{sT1}, 4096")
        b_(f"buffer_store_dwordx4 {r4(KA+4*i)}, v{vL16}, s[12:15], s{sT1} offen offset:{(i%4)*1024} sc1")
    for i in range(2):
        b_(f"buffer_store_dwordx4 {r4(KA+32+4*i)}, v{vL16}, s[12:15], s{sT2} offen offset:{i*1024} sc1")
    b_(f"s_cmp_lg_u32 s{sW4}, 3")
    b_(f"s_cbranch_scc1 {N}_kv3")
    for i in range(2):
        b_(f"buffer_store_dwordx4 {r4(KA+24+4*i)}, v{vL16}, s[12:15], s{sT1} offen offset:{2048+i*1024} sc1 ;nc")
    b_(f"buffer_store_dwordx4 {r4(KA+40)}, v{vL16}, s[12:15], s{sT2} offen offset:2048 sc1 ;nc")
    b_.label(f"{N}_kv3")
    sd.slot(3, b_)
    sd.slot(4)
    sd.slot(5)
    for s in range(6, 9):
        sd.slot(s)
    st.mark(5)
    a(f"s_cmp_ge_u32 s{sM}, 9")
    a(f"s_cbranch_scc1 {N}_done")
    lane_cg(vT+1, vT+2)
    get_tag()
    a(f"v_lshlrev_b32 v{TMP}, 8, v{vT+1}")
    a(f"s_lshl_b32 s{sT0}, s{sCG}, 12")
    a(f"s_add_u32 s{sT0}, s{sT0}, {WS_KFL}")
    a(f"s_mov_b32 s{sSpin}, 0")
    a.label(f"{N}_kpoll")
    a(f"buffer_load_dword v{TMP+1}, v{TMP}, s[12:15], s{sT0} offen sc1")
    a(f"s_add_u32 s{sSpin}, s{sSpin}, 1")
    a("s_waitcnt vmcnt(0)")
    a(f"v_cmp_eq_u32 vcc, s{sTag}, v{TMP+1}")
    a("s_nop 4")
    a("s_cmp_eq_u64 vcc, -1")
    a(f"s_cbranch_scc1 {N}_kgo")
    a("s_sleep 8")
    a(f"s_cmp_lt_u32 s{sSpin}, 0x20000")
    a(f"s_cbranch_scc1 {N}_kpoll")
    a.label(f"{N}_kgo")
    tab = 0
    for b in range(9):
        tab |= PB[b] << (2*b)
    a(f"s_lshl_b32 s{sT0}, s{sM}, 1")
    a(f"s_lshr_b32 s{sT0}, {tab:#x}, s{sT0}")
    a(f"s_and_b32 s{sT0}, s{sT0}, 3")
    a(f"s_and_b32 s{sT1}, s{sW4}, 1")
    a(f"s_add_u32 s{sT0}, s{sT0}, s{sT1}")
    a(f"s_lshl_b32 s{sT0}, s{sT0}, 1")
    a(f"s_mul_i32 s{sT4}, s{sCG}, {16*36864}")
    a(f"s_add_u32 s{sT4}, s{sT4}, {WS_KVP}")
    LD = XA
    for h in range(2):
        a(f"s_add_u32 s{sT1}, s{sT0}, {h}")
        a(f"s_sub_u32 s{sT2}, s{sT1}, s{sM}")
        a(f"s_add_u32 s{sT2}, s{sT2}, 1")
        a(f"s_mul_i32 s{sT3}, s{sM}, 3")
        a(f"s_add_u32 s{sT3}, s{sT3}, s{sT2}")
        a(f"s_add_u32 s{sPf}, s{sT1}, 27")
        a(f"s_cmp_ge_u32 s{sW4}, 2")
        a(f"s_cselect_b32 s{sT3}, s{sPf}, s{sT3}")
        a(f"s_lshl_b32 s{sT3}, s{sT3}, 10")
        a(f"s_add_u32 s{sT3}, s{sT3}, s{sT4}")
        a(f"s_cmp_lt_u32 s{sT2}, 3")
        a(f"s_cselect_b32 s{sT3}, s{sT3}, {OOB}")
        a(f"s_cmp_lt_u32 s{sT1}, 9")
        a(f"s_cselect_b32 s{sT3}, s{sT3}, {OOB}")
        for mm in range(16):
            a(f"buffer_load_dwordx4 {r4(LD+(h*16+mm)*4)}, v{vL16}, s[12:15], s{sT3} offen sc1")
            a(f"s_add_u32 s{sT3}, s{sT3}, 36864")
    a(f"s_lshl_b32 s{sT1}, s{sM}, 4")
    a(f"v_add_u32 v{TMP}, s{sT1}, v{vT+1}")
    a(f"v_mul_u32_u24 v{TMP}, 3641, v{TMP}")
    a(f"v_lshrrev_b32 v{TMP}, 16, v{TMP}")
    a(f"s_lshl_b32 s{sT1}, s{sT0}, 4")
    a(f"v_lshlrev_b32 v{TMP+1}, 2, v{vT+2}")
    a(f"v_add_u32 v{TMP+1}, s{sT1}, v{TMP+1}")
    for h in range(2):
        for mm in range(1, 16):
            a(f"s_waitcnt vmcnt({31 - (h*16+mm)})")
            for i in range(2):
                a(f"v_pk_add_f32 {pr(LD+h*64+2*i)}, {pr(LD+h*64+2*i)}, {pr(LD+(h*16+mm)*4+2*i)}")
        for r in range(4):
            a(f"v_add_u32 v{TMP+2}, {16*h+r}, v{TMP+1}")
            a(f"v_mul_u32_u24 v{TMP+2}, 3641, v{TMP+2}")
            a(f"v_lshrrev_b32 v{TMP+2}, 16, v{TMP+2}")
            a(f"v_cmp_eq_u32 vcc, v{TMP+2}, v{TMP}")
            a("s_nop 1")
            a(f"v_cndmask_b32 v{LD+h*64+r}, 0, v{LD+h*64+r}, vcc")
        a(f"v_cvt_pk_bf16_f32 v{STA+2*h}, v{LD+h*64}, v{LD+h*64+1}")
        a(f"v_cvt_pk_bf16_f32 v{STA+2*h+1}, v{LD+h*64+2}, v{LD+h*64+3}")
    swap_pair(a, STA)
    a(f"s_mul_i32 s{sT1}, s{sCG}, 36864")
    a(f"s_lshl_b32 s{sT2}, s{sM}, 12")
    a(f"s_add_u32 s{sT1}, s{sT1}, s{sT2}")
    a(f"s_lshl_b32 s{sT2}, s{sW4}, 10")
    a(f"s_add_u32 s{sT1}, s{sT1}, s{sT2}")
    a(f"s_add_u32 s{sT1}, s{sT1}, {WS_KVF}")
    a(f"buffer_store_dwordx4 {r4(STA)}, v{vL16}, s[12:15], s{sT1} offen{wt}")
    a(f"s_branch {N}_done")
    for b in pend:
        a.lines += b.lines
    a.label(f"{N}_mflag")
    a(f"s_lshl_b32 s{sT0}, s{sCG}, 4")
    a(f"s_add_u32 s{sT0}, s{sT0}, s{sM}")
    a(f"s_lshl_b32 s{sT0}, s{sT0}, 8")
    a(f"s_add_u32 s{sT0}, s{sT0}, {WS_KFL}")
    a(f"v_mov_b32 v{vT}, s{sTag}")
    a(f"v_lshrrev_b32 v{vT+1}, 2, v{vL16}")
    a(f"buffer_store_dword v{vT}, v{vT+1}, s[12:15], s{sT0} offen sc1")
    a(f"s_branch {N}_mflagback")
    a.label(f"{N}_nonce")
    a(f"s_memrealtime s[{sTag}:{sTag+1}]")
    a(f"v_mov_b32 v{RING+1}, 0")
    a("s_waitcnt lgkmcnt(0)")
    a(f"s_or_b32 s{sTag}, s{sTag}, 1")
    a(f"v_mov_b32 v{RING}, s{sTag}")
    a("s_mov_b64 exec, 1")
    a(f"buffer_store_dword v{RING}, v{RING+1}, s[16:19], s{sTagOff} offen sc1")
    a("s_mov_b64 exec, -1")
    a(f"s_branch {N}_nonceback")
    a.label(f"{N}_nonce2")
    a(f"s_mov_b32 s{sSpin}, 0")
    a.label(f"{N}_nonce3")
    a("s_waitcnt vmcnt(0)")
    a(f"v_readfirstlane_b32 s{sT0}, v{vT}")
    a(f"s_add_u32 s{sSpin}, s{sSpin}, 1")
    a(f"s_cmp_lg_u32 s{sT0}, 0")
    a(f"s_cbranch_scc1 {N}_nonce4")
    a(f"s_cmp_gt_u32 s{sSpin}, 0x20000")
    a(f"s_cbranch_scc1 {N}_nonce4")
    a("s_sleep 8")
    a(f"buffer_load_dword v{vT}, v{vT+1}, s[16:19], s{sTagOff} offen sc1")
    a(f"s_branch {N}_nonce3")
    a.label(f"{N}_nonce4")
    a(f"v_mov_b32 v{vT+1}, {LFLAG}")
    a(f"ds_write_b32 v{vT+1}, v{vT}")
    a("s_waitcnt lgkmcnt(0)")
    a(f"s_branch {N}_nonce2back")
    return NV
```

```python
import build
build.build(["k1","k2","k3"], "v_1.s", stamps=True, k2mod="k2_B")
build.build(["k1","k2","k3"], "v_2.s", stamps=True, k2mod="k2_B", k1=dict(cpf=False))
build.build(["k1","k2","k3"], "h_a.s", k2mod="k2_B")
build.build(["k1","k2","k3"], "h_b.s", k2mod="k2_B", k1=dict(cpf=False))
```

```python
class Asm:
    def __init__(self):
        self.lines = []
        self._uid = 0
    def __call__(self, s):
        for ln in s.split("\n"):
            ln = ln.strip()
            if ln:
                self.lines.append("    " + ln)
    def label(self, name):
        self.lines.append(name + ":")
    def comment(self, s):
        self.lines.append("    ; " + s)
    def raw(self, s):
        self.lines.append(s)
    def uid(self, p="L"):
        self._uid += 1
        return f"{p}_{self._uid}"
    def text(self):
        return "\n".join(self.lines) + "\n"

def kernel_header(a, name):
    a.raw(f".globl {name}")
    a.raw(".p2align 8")
    a.raw(f".type {name},@function")
    a.label(name)

def kernel_desc(name, vgpr, sgpr, accum, kernarg=88):
    return f""".amdhsa_kernel {name}
  .amdhsa_next_free_vgpr {vgpr}
  .amdhsa_next_free_sgpr {sgpr}
  .amdhsa_accum_offset {accum}
  .amdhsa_group_segment_fixed_size 0
  .amdhsa_kernarg_size {kernarg}
  .amdhsa_user_sgpr_count 2
  .amdhsa_user_sgpr_kernarg_segment_ptr 1
  .amdhsa_system_sgpr_workgroup_id_x 1
.end_amdhsa_kernel
"""

def srd(a, d, base, nbytes):
    a(f"s_mov_b32 s{d}, s{base}")
    a(f"s_and_b32 s{d+1}, s{base+1}, 0xffff")
    a(f"s_mov_b32 s{d+2}, {nbytes}")
    a(f"s_mov_b32 s{d+3}, 0x00020000")

STAMP_BASE_SGPR = 64
WS_STAMP = 48 << 20
class Stamps:
    def __init__(self, a, on, kidx):
        self.a, self.on, self.kidx, self.n = a, on, kidx, 0
    def mark(self, i):
        if self.on:
            self.a(f"s_memtime s[{STAMP_BASE_SGPR+2*i}:{STAMP_BASE_SGPR+2*i+1}]")
            self.n = max(self.n, i + 1)
    def markrt(self, i):
        if self.on:
            self.a(f"s_memrealtime s[{STAMP_BASE_SGPR+2*i}:{STAMP_BASE_SGPR+2*i+1}]")
    def dump(self, n, swave, vt0, vt1, sbase=96):
        if not self.on:
            return
        a = self.a
        a(f"s_load_dwordx2 s[{sbase+4}:{sbase+5}], s[0:1], 80")
        a("s_waitcnt lgkmcnt(0) vmcnt(0)")
        a(f"s_mov_b32 s{sbase}, s{sbase+4}")
        a(f"s_and_b32 s{sbase+1}, s{sbase+5}, 0xffff")
        a(f"s_mov_b32 s{sbase+2}, {64<<20}")
        a(f"s_mov_b32 s{sbase+3}, 0x00020000")
        a(f"s_lshl_b32 s{sbase+4}, s2, 4")
        a(f"s_add_u32 s{sbase+4}, s{sbase+4}, s{swave}")
        a(f"s_lshl_b32 s{sbase+4}, s{sbase+4}, 6")
        a(f"s_add_u32 s{sbase+4}, s{sbase+4}, {WS_STAMP + (self.kidx << 20)}")
        a(f"v_mov_b32 v{vt1}, 0")
        for i in range(n):
            a(f"v_mov_b32 v{vt0}, s{STAMP_BASE_SGPR+2*i}")
            a(f"buffer_store_dword v{vt0}, v{vt1}, s[{sbase}:{sbase+3}], s{sbase+4} offen offset:{4*i}")
            a("s_nop 1")
        a("s_waitcnt vmcnt(0)")


def z1_addr(a, sN, sM, sW, sB, sB8, sT, vL16, v9, vt, WS_HO, PLANE):
    a(f"s_mul_i32 s{sB}, s{sN}, 9")
    a(f"s_lshr_b32 s{sB}, s{sB}, 1")
    a(f"s_mul_i32 s{sB}, s{sB}, {PLANE}")
    a(f"s_lshl_b32 s{sT}, s{sM}, 13")
    a(f"s_add_u32 s{sB}, s{sB}, s{sT}")
    a(f"s_lshl_b32 s{sT}, s{sW}, 11")
    a(f"s_add_u32 s{sB}, s{sB}, s{sT}")
    a(f"s_add_u32 s{sB}, s{sB}, {WS_HO}")
    a(f"s_and_b32 s{sT}, s{sN}, 1")
    a(f"s_cselect_b32 s{sB8}, 0, {4*PLANE}")
    a(f"s_add_u32 s{sB8}, s{sB8}, s{sB}")
    a(f"v_lshrrev_b32 v{v9}, 7, v{vL16}")
    a(f"v_sub_u32 v{v9}, 0, v{v9}")
    a(f"v_and_b32 v{v9}, 3, v{v9}")
    a(f"v_bfe_u32 v{vt}, v{vL16}, 4, 1")
    a(f"v_xor_b32 v{v9}, v{v9}, v{vt}")
    a(f"s_lshl_b32 s{sT}, s{sT}, 1")
    a(f"v_xor_b32 v{v9}, s{sT}, v{v9}")
    a(f"v_lshlrev_b32 v{v9}, 4, v{v9}")
    a(f"v_lshrrev_b32 v{vt}, 5, v{vL16}")
    a(f"v_lshl_add_u32 v{v9}, v{vt}, 6, v{v9}")
    a(f"s_mul_i32 s{sT}, s{sT}, {PLANE//2}")
    a(f"s_add_u32 s{sB}, s{sB}, s{sT}")

def z1_op(a, op, reg, b, sB, sB8, vL16, v9, srd_, PLANE, sfx=""):
    if b < 8:
        if b and b % 2 == 0:
            a(f"s_add_u32 s{sB}, s{sB}, {PLANE}")
        a(f"{op} v[{reg}:{reg+3}], v{vL16}, s[{srd_}:{srd_+3}], s{sB} offen offset:{(b&1)*1024}{sfx}")
    else:
        a(f"{op} v[{reg}:{reg+3}], v{v9}, s[{srd_}:{srd_+3}], s{sB8} offen{sfx}")
```

```python
import sys
from asmlib import *
from layout import *
import k2, importlib
HEAD = open("parallel_sum__linear_attn_block__mixer_gmlp__prompt.s.ref").read().split("; Override")[0]
def build(kernels, out, stamps=False, **kw):
    a = Asm()
    a.raw(HEAD.rstrip())
    descs = []
    k2thr = 448 if kw.get('k2', {}).get('pfw', False) else 384
    body = Asm()
    for kn in kernels:
        if kn == "k2":
            k2 = importlib.import_module(kw.get("k2mod", "k2"))
            nv = k2.gen_k2(body, "k2_kernel", stamps=stamps, **kw.get("k2", {}))
            a.raw(f"; @launch kernel=k2_kernel grid=(256,1,1) block=({k2thr},1,1) lds={k2.K2_LDS}")
            descs.append(kernel_desc("k2_kernel", nv, 102 if stamps else 80, (nv+3)//4*4))
        elif kn == "k3":
            import k3
            nv = k3.gen_k3(body, "k3_kernel", stamps=stamps, **kw.get("k3", {}))
            a.raw(f"; @launch kernel=k3_kernel grid=(240,1,1) block=(384,1,1) lds={k3.K3_LDS}")
            descs.append(kernel_desc("k3_kernel", nv, 102 if stamps else 64, (nv+3)//4*4))
        elif kn == "k0":
            import k0
            nv = k0.gen_k0(body, "k0_kernel", **kw.get("k0", {}))
            a.raw(f"; @launch kernel=k0_kernel grid=(256,1,1) block=(256,1,1) lds={k0.K0_LDS}")
            descs.append(kernel_desc("k0_kernel", nv, 64, (nv+3)//4*4))
        elif kn == "k1":
            k1 = importlib.import_module(kw.get("k1mod", "k1"))
            nv = k1.gen_k1(body, "k1_kernel", stamps=stamps, **kw.get("k1", {}))
            a.raw(f"; @launch kernel=k1_kernel grid=(256,1,1) block=(512,1,1) lds={k1.K1_LDS}")
            descs.append(kernel_desc("k1_kernel", nv, 102, (nv+3)//4*4))
    a.raw('.amdgcn_target "amdgcn-amd-amdhsa--gfx950"')
    a.raw(".text")
    a.lines += body.lines
    a.raw("code_end:")
    a.raw('.section .rodata,"a"')
    for d in descs:
        a.raw(".p2align 6")
        a.raw(d)
    open(out, "w").write(a.text())
if __name__ == "__main__":
    build(sys.argv[2].split(","), sys.argv[1], stamps=(len(sys.argv) > 3))
```

```python
import struct
from asmlib import *
from layout import *
from k2 import r4
def f2h(x): return hex(struct.unpack("<I", struct.pack("<f", x))[0])
def pr(x): return f"v[{x}:{x+1}]"
K0_LDS = 1024
OOB = 0x7f000000

def gen_k0(a, name="k0_kernel", stamps=False, pf=True):
    N = name
    X = 8
    SS = 32
    LN = 40
    NT = 48
    T2 = 56
    O = 64
    kernel_header(a, name)
    a("s_cmp_ge_u32 s2, 256")
    a(f"s_cbranch_scc1 {N}_end")
    a("s_load_dwordx4 s[32:35], s[0:1], 0")
    a("s_load_dwordx2 s[36:37], s[0:1], 16")
    a("s_load_dwordx4 s[40:43], s[0:1], 32")
    a("s_load_dwordx2 s[44:45], s[0:1], 56")
    a("s_load_dwordx2 s[46:47], s[0:1], 80")
    a("v_lshrrev_b32 v1, 6, v0")
    a("v_and_b32 v2, 63, v0")
    a("v_readfirstlane_b32 s20, v1")
    a("v_lshlrev_b32 v3, 4, v2")
    a("v_and_b32 v4, 15, v2")
    a("v_lshrrev_b32 v5, 4, v2")
    a("s_lshl_b32 s21, s2, 2")
    a("s_add_u32 s21, s21, s20")
    a("s_waitcnt lgkmcnt(0)")
    srd(a, 12, 46, WS_END)
    a("s_cmp_ge_u32 s2, 128")
    a(f"s_cbranch_scc1 {N}_pf")
    srd(a, 4, 32, S*D*2)
    a("s_lshl_b32 s22, s2, 4")
    a("v_add_u32 v6, s22, v4")
    a("v_mul_u32_u24 v6, 1152, v6")
    a("v_lshl_add_u32 v6, v5, 4, v6")
    a("s_lshl_b32 s23, s20, 6")
    a("s_add_u32 s24, s23, 1024")
    a("s_cmp_lt_u32 s20, 2")
    a(f"s_cselect_b32 s24, s24, {OOB}")
    for i in range(4):
        a(f"buffer_load_dwordx4 {r4(X+4*i)}, v6, s[4:7], s23 offen offset:{i*256}")
    a(f"buffer_load_dwordx4 {r4(X+16)}, v6, s[4:7], s24 offen")
    a("s_mov_b32 s25, 0x3f803f80")
    for i in range(4):
        a(f"v_mov_b32 v{SS+i}, 0")
    a("v_lshlrev_b32 v7, 3, v4")
    a("s_lshl_b32 s26, s20, 7")
    a("v_add_u32 v1, s26, v7")
    a("s_lshr_b32 s27, s2, 1")
    a("s_mul_i32 s27, s27, 36")
    a("s_and_b32 s28, s2, 1")
    a("s_add_u32 s27, s27, s28")
    a("s_lshl_b32 s27, s27, 10")
    a("s_lshl_b32 s28, s20, 11")
    a("s_add_u32 s27, s27, s28")
    a(f"s_add_u32 s27, s27, {WS_XN}")
    for i in range(5):
        a(f"s_waitcnt vmcnt({4-i})")
        for r in range(4):
            o = 2 if r & 1 else 0
            a(f"v_dot2c_f32_bf16 v{SS+o}, s25, v{X+4*i+r}")
            a(f"v_dot2c_f32_bf16 v{SS+o+1}, v{X+4*i+r}, v{X+4*i+r}")
    a("s_nop 3")
    for i in range(2):
        a(f"v_add_f32 v{SS+i}, v{SS+i}, v{SS+2+i}")
    for sw in ("v_permlane32_swap_b32", "v_permlane16_swap_b32"):
        for i in range(2):
            a(f"v_mov_b32 v{SS+2+i}, v{SS+i}")
        a("s_nop 1")
        for i in range(2):
            a(f"{sw} v{SS+i}, v{SS+2+i}")
        a("s_nop 1")
        for i in range(2):
            a(f"v_add_f32 v{SS+i}, v{SS+i}, v{SS+2+i}")
    a(f"ds_write_b64 v1, {pr(SS)}")
    a("s_waitcnt lgkmcnt(0)")
    a("s_barrier")
    for w in range(4):
        a(f"ds_read_b64 {pr(NT+2*w)}, v7 offset:{w*128}")
    a("s_waitcnt lgkmcnt(0)")
    a(f"v_pk_add_f32 {pr(NT)}, {pr(NT)}, {pr(NT+2)}")
    a(f"v_pk_add_f32 {pr(NT+4)}, {pr(NT+4)}, {pr(NT+6)}")
    a(f"v_pk_add_f32 {pr(SS)}, {pr(NT)}, {pr(NT+4)}")
    inv = f2h(1.0/576)
    a(f"v_mul_f32 v{SS}, {inv}, v{SS}")
    a(f"v_mul_f32 v{SS+1}, {inv}, v{SS+1}")
    a(f"v_fma_f32 v{SS+1}, -v{SS}, v{SS}, v{SS+1}")
    a(f"v_max_f32 v{SS+1}, 0, v{SS+1}")
    a(f"v_add_f32 v{SS+1}, 0x3727c5ac, v{SS+1}")
    a(f"v_rsq_f32 v{LN}, v{SS+1}")
    a("s_nop 0")
    a(f"v_mul_f32 v{LN+1}, v{SS}, v{LN}")
    a(f"v_sub_f32 v{LN+1}, 0, v{LN+1}")
    a(f"v_mul_f32 v{LN+2}, {f2h(GK)}, v{LN}")
    a(f"v_mul_f32 v{LN+3}, {f2h(GK)}, v{LN+1}")
    for i in range(5):
        if i == 4:
            a("s_cmp_lt_u32 s20, 2")
            a(f"s_cselect_b32 s27, s27, {OOB}")
        for r in range(4):
            a(f"v_lshlrev_b32 v{NT+2*r}, 16, v{X+4*i+r}")
            a(f"v_and_b32 v{NT+2*r+1}, 0xffff0000, v{X+4*i+r}")
        for ver in range(2):
            L = LN + 2*ver; Q = O + (i % 2)*8 + ver*4
            for r in range(4):
                a(f"v_pk_fma_f32 {pr(T2+2*r)}, {pr(NT+2*r)}, {pr(L)}, {pr(L)} op_sel:[0,0,1] op_sel_hi:[1,0,1]")
            for r in range(4):
                a(f"v_cvt_pk_bf16_f32 v{Q+r}, v{T2+2*r}, v{T2+2*r+1}")
            a(f"s_add_u32 s28, s27, {ver*S*D*2}")
            a(f"buffer_store_dwordx4 {r4(Q)}, v3, s[12:15], s28 offen sc1")
        a("s_add_u32 s27, s27, 8192")
    a("s_cmp_lg_u32 s21, 0")
    a(f"s_cbranch_scc1 {N}_pf")
    a("s_memrealtime s[28:29]")
    a("s_waitcnt lgkmcnt(0)")
    a("v_mov_b32 v1, s28")
    a(f"s_mov_b32 s30, {WS_TAG}")
    a("v_lshrrev_b32 v7, 2, v3")
    a("buffer_store_dword v1, v7, s[12:15], s30 offen sc1")
    a.label(f"{N}_pf")
    if pf:
        for base, nbytes in ((40, D*F*2), (34, D*3*D*2), (42, S*S*2), (44, FH*D*2), (36, D*D*2)):
            n = (nbytes + (1 << 20) - 1) >> 20
            srd(a, 8, base, nbytes)
            a(f"s_mul_i32 s22, s21, {n*1024}")
            for i in range(n):
                if i % 4 == 0 and i:
                    a("s_add_u32 s22, s22, 4096")
                a(f"buffer_load_dwordx4 v[80:83], v3, s[8:11], s22 offen offset:{(i%4)*1024}")
        a("s_cmp_lg_u32 s20, 3")
        a(f"s_cbranch_scc1 {N}_end")
        a("s_getpc_b64 s[28:29]")
        a.label(f"{N}_pc")
        a("s_lshr_b32 s22, s2, 3")
        a("s_mul_i32 s22, s22, 3072")
        a("v_add_u32 v6, s22, v3")
        a(f"v_mov_b32 v7, (code_end - {N}_pc - 16)")
        for i in range(3):
            a("v_min_u32 v1, v6, v7")
            a("global_load_dwordx4 v[80:83], v1, s[28:29]")
            a("v_add_u32 v6, 1024, v6")
    a.label(f"{N}_end")
    a("s_endpgm")
    return 84
```

```python
import build
build.build(["k1","k2","k3"], "v_1.s", stamps=True, k2mod="k2_B", k1mod="k1_v5")
build.build(["k0","k1","k2","k3"], "v_2.s", stamps=True, k2mod="k2_B")
build.build(["k0","k1","k2","k3"], "v_3.s", stamps=True, k2mod="k2_B", k0=dict(pf=False))
build.build(["k1","k2","k3"], "h_a.s", k2mod="k2_B", k1mod="k1_v5")
build.build(["k0","k1","k2","k3"], "h_b.s", k2mod="k2_B")
```

```python
import build
build.build(["k1","k2","k3"], "v_1.s", stamps=True, k2mod="k2_B", k1=dict(kva=False))
build.build(["k1","k2","k3"], "v_2.s", stamps=True, k2mod="k2_B")
build.build(["k1","k2","k3"], "h_a.s", k2mod="k2_B")
```
